```python
import torch

def _softmax(x, axis=-1):
    return torch.softmax(x, dim=axis)
def _gelu(x):
    return torch.nn.functional.gelu(x, approximate="tanh")
def _silu(x):
    return torch.nn.functional.silu(x)
def _sigmoid(x):
    return torch.sigmoid(x)
def _layernorm(x, axis=-1, eps=1e-5):
    m = x.mean(dim=axis, keepdim=True)
    v = x.var(dim=axis, keepdim=True, unbiased=False)
    return (x - m) / torch.sqrt(v + eps)
def _scatter_add(tgt, idx, src, axis=0):
    return tgt.clone().index_add_(axis, idx, src)
def _segment_sum(src, seg, n):
    out = torch.zeros((n,) + src.shape[1:], dtype=src.dtype)
    return out.index_add_(0, seg, src)
def _pad(x, pw):
    flat = tuple(v for pair in reversed(pw) for v in pair)
    return torch.nn.functional.pad(x, flat)

kernel_name = 'parallel_sum__sliding_local_dilated__geglu_ffn__prompt'

def setup_inputs():

    _w = (lambda a: (lambda t: t.to(torch.bfloat16) if t.is_floating_point() else t)(torch.as_tensor(a)))
    def _A_setup():
        B, S, D = 1, 2048, 448
        return {
            "x": _w((lambda *s: torch.randn(*s, dtype=torch.bfloat16) * 0.05)(B, S, D)),
            "wqkv": _w((lambda *s: torch.randn(*s, dtype=torch.bfloat16) * 0.05)(D, 3 * D)),
            "wo": _w((lambda *s: torch.randn(*s, dtype=torch.bfloat16) * 0.05)(D, D)),
        }
    _A_in = _A_setup()

    def _B_setup():
        B, S, D, F = 1, 2048, 448, 1792
        return {
            "x": _w((lambda *s: torch.randn(*s, dtype=torch.bfloat16) * 0.05)(B, S, D)),
            "w_gate": _w((lambda *s: torch.randn(*s, dtype=torch.bfloat16) * 0.05)(D, F)),
            "w_up": _w((lambda *s: torch.randn(*s, dtype=torch.bfloat16) * 0.05)(D, F)),
            "w_down": _w((lambda *s: torch.randn(*s, dtype=torch.bfloat16) * 0.05)(F, D)),
        }
    _B_in = _B_setup()

    return {
        "A_x": _A_in["x"],
        "A_wqkv": _A_in["wqkv"],
        "A_wo": _A_in["wo"],
        "B_x": _B_in["x"],
        "B_w_gate": _B_in["w_gate"],
        "B_w_up": _B_in["w_up"],
        "B_w_down": _B_in["w_down"],
    }

def reference(A_x, A_wqkv, A_wo, B_x, B_w_gate, B_w_up, B_w_down):
    def _A_ref(x, wqkv, wo):
        B, S, D = x.shape
        H = 16; Dh = D // H
        W, dil = 8, 2
        qkv = (lambda x, *d: x.permute(*d))((x @ wqkv).reshape(B, S, 3, H, Dh), 2, 0, 3, 1, 4)
        q, k, v = qkv[0], qkv[1], qkv[2]
        scale = Dh ** -0.5
        pos = torch.arange(S)
        off = torch.arange(W) * dil
        idx = pos[:, None] - off[None, :]
        mask = idx >= 0
        idx_c = torch.where(mask, idx, 0).reshape(-1)
        kg = k[:, :, idx_c, :].reshape(B, H, S, W, Dh)
        vg = v[:, :, idx_c, :].reshape(B, H, S, W, Dh)
        logits = torch.einsum("bhsd,bhswd->bhsw", q, kg) * scale
        logits = torch.where(mask[None, None, :, :], logits, -1e9)
        attn = _softmax(logits, axis=-1)
        o = torch.einsum("bhsw,bhswd->bhsd", attn, vg)
        return (lambda x, *d: x.permute(*d))(o, 0, 2, 1, 3).reshape(B, S, D) @ wo

    def _B_ref(x, w_gate, w_up, w_down):
        return (_gelu(x @ w_gate) * (x @ w_up)) @ w_down

    x = A_x
    xn = _layernorm(x, axis=-1)
    return x + _A_ref(xn, A_wqkv, A_wo) + _B_ref(xn, B_w_gate, B_w_up, B_w_down)
```

```python
class K:
    def __init__(self, name):
        self.name = name; self.L = []; self.nlab = 0
    def e(self, s):
        for line in s.split("\n"):
            line = line.rstrip()
            if line.strip(): self.L.append("    " + line.strip() if not line.strip().endswith(":") else line.strip())
    def lab(self, base="L"):
        self.nlab += 1
        return f"{self.name[:6]}_{base}_{self.nlab}"
    def text(self):
        return "\n".join(self.L)

def kernel_text(name, body, vgpr, sgpr, accum=None):
    if accum is None: accum = (vgpr + 3)//4*4
    t = f""".globl {name}
.p2align 8
.type {name},@function
{name}:
{body}
    s_endpgm
"""
    d = f""".amdhsa_kernel {name}
  .amdhsa_next_free_vgpr {vgpr}
  .amdhsa_next_free_sgpr {sgpr}
  .amdhsa_accum_offset {accum}
  .amdhsa_group_segment_fixed_size 0
  .amdhsa_kernarg_size 80
  .amdhsa_user_sgpr_count 2
  .amdhsa_user_sgpr_kernarg_segment_ptr 1
  .amdhsa_system_sgpr_workgroup_id_x 1
.end_amdhsa_kernel
"""
    return t, d

def file_text(launches, kernels, header=""):
    s = header
    for (n, g, b, l) in launches:
        s += f"; @launch kernel={n} grid=({g},1,1) block=({b},1,1) lds={l}\n"
    s += '.amdgcn_target "amdgcn-amd-amdhsa--gfx950"\n.text\n'
    for t, d in kernels: s += t
    s += '.section .rodata,"a"\n'
    for t, d in kernels: s += ".p2align 6\n" + d
    return s
```

```python
import sys, math
from asmlib import *

NKS=72
A2_OFF=0
A2_VT=NKS*1024
A2_BYTES=132*A2_VT
STATS_OFF=10*1024*1024
FLAG_OFF=STATS_OFF+65536
STAMP_OFF=32*1024*1024
WS_BYTES=0x10000000
XB=2048*896

SLOT=49152
STAT_LDS=3*SLOT
DUMMY_LDS=STAT_LDS+4096
LDS_BYTES=DUMMY_LDS+1024

C0=-2.0*math.sqrt(2.0/math.pi)*math.log2(math.e)
C1=C0*0.044715
import struct
def f2u(x): return struct.unpack("<I",struct.pack("<f",x))[0]

class Q:
    def __init__(s, mx): s.q=[]; s.mx=mx
    def issue(s, tag): s.q.append(tag)
    def need(s, pred):
        last=-1
        for i,t in enumerate(s.q):
            if pred(t): last=i
        if last<0: return None
        n=len(s.q)-1-last
        s.q=s.q[last+1:]
        assert n<=s.mx, n
        return n
    def clear(s): s.q=[]

def srd(k, d, lo, hi, size):
    k.e(f"s_mov_b32 s{d}, s{lo}\ns_mov_b32 s{d+1}, s{hi}\ns_mov_b32 s{d+2}, {size}\ns_mov_b32 s{d+3}, 0x20000")

S_W=12
S_W1K=13
S_J=14; S_CG=15
SX=36; SWA=40; SWB=44; SWS=48; SMIX=52

def load_ptrs(k):
    k.e("s_load_dwordx16 s[16:31], s[0:1], 0\ns_load_dwordx4 s[32:35], s[0:1], 64")

def allsum(k, v, t):
    for mod in ["quad_perm:[1,0,3,2]","quad_perm:[2,3,0,1]","row_half_mirror","row_mirror"]:
        k.e(f"s_nop 1\nv_add_f32_dpp v{v}, v{v}, v{v} {mod} row_mask:0xf bank_mask:0xf")
    for sw in ["v_permlane16_swap_b32","v_permlane32_swap_b32"]:
        k.e(f"v_mov_b32 v{t}, v{v}\ns_nop 1\n{sw} v{v}, v{t}\ns_nop 1\nv_add_f32 v{v}, v{v}, v{t}")

def rbf16(k, v):
    k.e(f"v_cvt_pk_bf16_f32 v{v}, v{v}, v{v}\nv_lshlrev_b32 v{v}, 16, v{v}")

def stats_compute(k, d, t):
    u=t+2
    for i in range(4):
        k.e(f"v_lshlrev_b32 v{u+2*i}, 16, v{d+i}\nv_and_b32 v{u+2*i+1}, 0xffff0000, v{d+i}")
    k.e(f"v_add_f32 v{t}, v{u}, v{u+1}")
    for i in range(2,8): k.e(f"v_add_f32 v{t}, v{t}, v{u+i}")
    allsum(k, t, u+8)
    k.e(f"v_mul_f32 v{t}, {hex(f2u(1.0/448))}, v{t}")
    for i in range(8): k.e(f"v_sub_f32 v{u+i}, v{u+i}, v{t}")
    k.e(f"v_mul_f32 v{t+1}, v{u}, v{u}")
    for i in range(1,8): k.e(f"v_fmac_f32 v{t+1}, v{u+i}, v{u+i}")
    k.e(f"v_mbcnt_lo_u32_b32 v{u}, -1, 0\nv_mbcnt_hi_u32_b32 v{u}, -1, v{u}\nv_cmp_gt_u32 vcc, 56, v{u}\ns_nop 1\nv_cndmask_b32 v{t+1}, 0, v{t+1}, vcc")
    allsum(k, t+1, u+8)
    k.e(f"v_mul_f32 v{t+1}, {hex(f2u(1.0/448))}, v{t+1}")
    rbf16(k, t); rbf16(k, t+1)
    k.e(f"v_add_f32 v{t+1}, {hex(f2u(1e-5))}, v{t+1}")
    rbf16(k, t+1)
    k.e(f"v_sqrt_f32 v{t+1}, v{t+1}\ns_nop 0")
    rbf16(k, t+1)

def gen_k0():
    k=K("k0")
    k.e("s_cmp_ge_u32 s2, 256\ns_cbranch_scc1 k0_done")
    load_ptrs(k)
    k.e("""
    v_lshrrev_b32 v2, 6, v0
    v_and_b32 v1, 63, v0
    s_lshl_b32 s3, s2, 3
    v_add_u32 v2, s3, v2
    v_mul_u32_u24 v3, 896, v2
    v_lshl_add_u32 v3, v1, 4, v3
    v_mov_b32 v4, 0
    v_mov_b32 v5, 0
    v_mov_b32 v6, 0
    v_mov_b32 v7, 0
    s_waitcnt lgkmcnt(0)
    """)
    srd(k, SX, 16, 17, XB); srd(k, SWS, 34, 35, WS_BYTES)
    k.e(f"s_mov_b32 exec_hi, 0x00ffffff\nbuffer_load_dwordx4 v[4:7], v3, s[{SX}:{SX+3}], 0 offen\ns_mov_b64 exec, -1\ns_waitcnt vmcnt(0)")
    stats_compute(k, 4, 8)
    k.e(f"""
    v_mov_b32 v10, 0
    v_mov_b32 v11, 0
    v_lshlrev_b32 v3, 4, v2
    s_mov_b32 s56, {STATS_OFF}
    s_mov_b64 exec, 1
    buffer_store_dwordx4 v[8:11], v3, s[{SWS}:{SWS+3}], s56 offen sc0 sc1
    k0_done:
    """)
    return kernel_text("k0_kernel", k.text(), 32, 96)

def p1_setup(k):
    k.e("s_cmp_ge_u32 s2, 256\ns_cbranch_scc1 k1_done")
    load_ptrs(k)
    k.e(f"""
    v_lshrrev_b32 v2, 6, v0
    v_and_b32 v1, 63, v0
    s_and_b32 s56, s2, 7
    v_readfirstlane_b32 s{S_W}, v2
    s_lshr_b32 s57, s2, 3
    s_lshr_b32 s58, s56, 1
    s_and_b32 s59, s56, 1
    s_lshl_b32 s{S_W1K}, s{S_W}, 10
    s_cmp_ge_u32 s57, 21
    s_cbranch_scc1 k1_A
    """)

def x_read_addr(k, vp0, vp1, extra_s=None):
    k.e(f"""
    v_and_b32 v10, 15, v1
    v_lshrrev_b32 v11, 4, v1
    v_lshrrev_b32 v12, 1, v10
    v_xor_b32 v13, v11, v12
    v_xor_b32 v14, 4, v13
    v_lshlrev_b32 v12, 7, v10
    v_lshl_add_u32 v{vp0}, v13, 4, v12
    v_lshl_add_u32 v{vp1}, v14, 4, v12
    """)
    if extra_s is not None:
        k.e(f"v_add_u32 v{vp0}, s{extra_s}, v{vp0}\nv_add_u32 v{vp1}, s{extra_s}, v{vp1}")

def ones_row(k, vt):
    k.e(f"""
    v_lshrrev_b32 v{vt}, 3, v1
    v_mul_u32_u24 v{vt}, {SLOT}, v{vt}
    v_and_b32 v{vt+1}, 7, v1
    v_lshl_add_u32 v{vt}, v{vt+1}, 4, v{vt}
    v_mov_b32 v{vt+2}, 0x3f803f80
    v_mov_b32 v{vt+3}, 0x3f803f80
    v_mov_b32 v{vt+4}, 0x3f803f80
    v_mov_b32 v{vt+5}, 0x3f803f80
    s_mov_b64 exec, 0xffffff
    ds_write_b128 v{vt}, v[{vt+2}:{vt+5}]
    s_mov_b64 exec, -1
    """)

RA=8; RB=3
F_ACC=16; F_ACCB=F_ACC+RA*8; F_WF=F_ACCB+RB*8; F_XF=F_WF+112
assert F_XF+40==256
def gen_F(k):
    vq=Q(63); lq=Q(15)
    k.e(f"""
    s_mul_i32 s60, s57, 37
    s_lshr_b32 s60, s60, 8
    s_mul_i32 s61, s60, 7
    s_sub_u32 s61, s57, s61
    s_mul_i32 s{S_J}, s58, 3
    s_add_u32 s{S_J}, s{S_J}, s60
    s_mul_i32 s{S_CG}, s59, 7
    s_add_u32 s{S_CG}, s{S_CG}, s61
    v_lshrrev_b32 v4, 4, v1
    s_lshl_b32 s60, s{S_W}, 2
    v_add_u32 v4, s60, v4
    v_and_b32 v5, 3, v4
    v_bfe_u32 v6, v4, 3, 1
    v_lshl_or_b32 v5, v6, 2, v5
    v_lshlrev_b32 v5, 1, v5
    v_and_b32 v6, 15, v1
    v_xor_b32 v5, v5, v6
    v_lshlrev_b32 v5, 4, v5
    v_mul_u32_u24 v3, 3584, v4
    v_add_u32 v3, v3, v5
    s_lshl_b32 s60, s{S_CG}, 8
    v_add_u32 v3, s60, v3
    """)
    k.e(f"""
    v_lshrrev_b32 v10, 3, v1
    v_and_b32 v11, 7, v1
    v_lshrrev_b32 v12, 4, v1
    v_xor_b32 v13, v11, v12
    v_xor_b32 v14, 4, v13
    s_mul_i32 s62, s{S_J}, 175
    s_lshl_b32 s60, s{S_W}, 3
    s_add_u32 s60, s60, s62
    s_sub_u32 s60, s60, 1
    s_mul_i32 s60, s60, 896
    v_mul_u32_u24 v10, 896, v10
    s_bitcmp1_b32 s{S_W}, 0
    s_cselect_b64 vcc, -1, 0
    v_cndmask_b32 v4, v13, v14, vcc
    v_lshl_add_u32 v4, v4, 4, v10
    v_add_u32 v4, s60, v4
    v_add_u32 v2, {64*896}, v4
    s_add_u32 s60, s62, 127
    s_mul_i32 s60, s60, 896
    s_lshl_b32 s61, s{S_W}, 7
    s_add_u32 s60, s60, s61
    s_cmp_eq_u32 s{S_W}, 7
    s_cselect_b32 s60, 0x80000000, s60
    v_lshl_add_u32 v5, v13, 4, v10
    v_lshl_add_u32 v6, v14, 4, v10
    v_add_u32 v5, s60, v5
    v_add_u32 v6, s60, v6
    s_mov_b64 s[80:81], -1
    s_cmp_eq_u32 s{S_W}, 0
    s_cselect_b32 s80, 0xffffff00, s80
    """)
    k.e(f"""
    s_lshl_b32 s63, s{S_W}, 11
    s_add_u32 s63, s63, {SLOT}
    s_cmp_eq_u32 s{S_W}, 7
    s_cselect_b32 s63, {DUMMY_LDS}, s63
    s_cselect_b32 s64, 0, 1
    """)
    x_read_addr(k, 7, 8)
    k.e(f"""
    v_lshrrev_b32 v12, 2, v10
    v_and_b32 v13, 3, v10
    v_and_b32 v14, 1, v11
    v_lshl_or_b32 v14, v14, 2, v12
    v_lshl_add_u32 v12, v11, 3, v12
    v_lshlrev_b32 v12, 8, v12
    v_lshl_add_u32 v12, v13, 3, v12
    v_xor_b32 v14, s{S_W}, v14
    v_lshl_add_u32 v9, v14, 5, v12
    v_add_u32 v9, 16384, v9
    """)
    ones_row(k, 10); lq.issue("ones")
    k.e("s_waitcnt lgkmcnt(0)"); lq.clear()
    srd(k, SX, 16, 17, XB); srd(k, SWA, 24, 25, 448*3584); srd(k, SWB, 26, 27, 448*3584); srd(k, SWS, 34, 35, WS_BYTES)

    def dma_x(p, s):
        sl=(p%3)*SLOT
        pre = "s_mov_b64 exec, s[80:81]\n" if s==0 else ""
        post= "\ns_mov_b64 exec, -1" if s==0 else ""
        k.e(f"s_add_u32 m0, s{S_W1K}, {sl+s*8192}\ns_movk_i32 s56, {p*128}\n{pre}buffer_load_dwordx4 v{(4,2)[s]}, s[{SX}:{SX+3}], s56 offen lds{post}")
        vq.issue(("S",p,"x"))
    def dma_w(ks, mat):
        p=ks>>1; sl=(p%3)*SLOT+16384+(ks&1)*16384+mat*8192
        k.e(f"s_add_u32 m0, s{S_W1K}, {sl}\ns_mov_b32 s56, {ks*32*3584}\nbuffer_load_dwordx4 v3, s[{(SWA,SWB)[mat]}:{(SWA,SWB)[mat]+3}], s56 offen lds")
        vq.issue(("S",p,"w",ks))
    def dma_xb(b, h):
        k.e(f"s_mul_i32 s56, s64, {b*14336+h*1024}\ns_add_u32 m0, s63, s56\ns_mov_b32 s56, {(16*b+8*h)*896}\nbuffer_load_dwordx4 v{5+h}, s[{SX}:{SX+3}], s56 offen lds")
        vq.issue(("XB",))
    def stage(p):
        return [lambda:dma_x(p,0), lambda:dma_x(p,1), lambda:dma_w(2*p,0), lambda:dma_w(2*p,1), lambda:dma_w(2*p+1,0), lambda:dma_w(2*p+1,1)]
    cur={"slot":0}
    def setslot(s):
        d=(s-cur["slot"])*SLOT
        if d:
            k.e(f"v_add_u32 v7, {d&0xffffffff}, v7\nv_add_u32 v8, {d&0xffffffff}, v8\nv_add_u32 v9, {d&0xffffffff}, v9")
        cur["slot"]=s
    def lguard():
        if len(lq.q)>=15:
            k.e("s_waitcnt lgkmcnt(11)"); lq.q=lq.q[-11:]
    def rd_w(ks):
        for mat in range(2):
            for h in range(2):
                b=F_WF+ks*8+mat*4+2*h
                lguard()
                k.e(f"ds_read_b64_tr_b16 v[{b}:{b+1}], v9 offset:{(ks&1)*16384+mat*8192+h*1024}")
                lq.issue(("W",ks))
    def xbuf(c): return F_XF+(c%10)*4
    def rd_x(c):
        b=xbuf(c)
        if c<14*RA:
            ks,m=divmod(c,RA); off=m*2048
        else:
            bb,ks=divmod(c-14*RA,14); off=bb*14336+(ks>>1)*2048
        lguard()
        k.e(f"ds_read_b128 v[{b}:{b+3}], v{7+(ks&1)} offset:{off}")
        lq.issue(("X",c))
    def lwait(pred):
        n=lq.need(pred)
        if n is not None: k.e(f"s_waitcnt lgkmcnt({n})")
    def mfma2(c, acc, ks, first):
        lwait(lambda t: t==("X",c) or t==("W",ks))
        for mat in range(2):
            a=acc+mat*4; w=F_WF+ks*8+mat*4; x=xbuf(c)
            cc="0" if first else f"v[{a}:{a+3}]"
            k.e(f"v_mfma_f32_16x16x32_bf16 v[{a}:{a+3}], v[{w}:{w+3}], v[{x}:{x+3}], {cc}")
    st0=stage(0)
    for f in st0: f()
    k.e(f"""
    v_add_u32 v10, s62, v0
    v_subrev_u32 v10, 1, v10
    v_lshlrev_b32 v10, 4, v10
    v_add_u32 v10, {STATS_OFF}, v10
    buffer_load_dwordx2 v[14:15], v10, s[{SWS}:{SWS+3}], 0 offen sc0 sc1
    """); vq.issue(("ST",))
    for f in stage(1)[:2]: f()
    n=vq.need(lambda t: t[0]=="S" and t[1]==0 and (t[2]=="x" or t[3]==0))
    k.e(f"s_waitcnt vmcnt({n})\ns_barrier")
    rd_w(0)
    for c in range(RA): rd_x(c)
    for f in stage(1)[2:]: f()
    n=vq.need(lambda t: t[0]=="S" and t[1]==0)
    k.e(f"s_waitcnt vmcnt({n})\ns_barrier")
    pend=stage(2)
    nxt=RA
    for ks in range(14):
        p=ks>>1
        if ks&1:
            if ks<13: n=vq.need(lambda t: t[0]=="S" and t[1]<=p+1)
            else: n=vq.need(lambda t: t[0]=="XB")
            k.e(f"s_waitcnt vmcnt({n}) lgkmcnt(0)\ns_barrier"); lq.clear()
            setslot((p+1)%3 if ks<13 else 1)
            if p+3<7: pend=pend+stage(p+3)
            elif p==4: pend=pend+[ (lambda b=b,h=h: dma_xb(b,h)) for b in range(RB) for h in range(2)]
        if ks==3:
            k.e(f"""
            v_rcp_f32 v13, v15
            v_mul_f32 v15, v15, v15
            v_sub_f32 v12, 0, v14
            v_mul_f32 v14, v13, v13
            v_mul_f32 v14, v14, v13
            v_mul_f32 v14, {hex(f2u(C1))}, v14
            v_mul_f32 v13, {hex(f2u(C0))}, v13
            v_lshlrev_b32 v10, 4, v0
            v_cmp_gt_u32 vcc, 176, v0
            v_lshlrev_b32 v11, 4, v1
            v_add_u32 v10, {STAT_LDS}, v10
            v_add_u32 v11, {DUMMY_LDS}, v11
            v_cndmask_b32 v10, v11, v10, vcc
            ds_write_b128 v10, v[12:15]
            """)
            lq.issue(("st",))
        if ks<13: rd_w(ks+1)
        lim=(ks+2)*RA if ks<13 else 14*RA+14*RB
        for m in range(RA):
            c=ks*RA+m
            while nxt<min(c+10, lim): rd_x(nxt); nxt+=1
            mfma2(c, F_ACC+m*8, ks, ks==0)
            if pend and m%2==1 or (pend and len(pend)>(RA-m)//2*1+2): pend.pop(0)()
        while pend and ks&1==0: pend.pop(0)()
    assert not pend
    tot=14*RA+14*RB
    for b in range(RB):
        for ks in range(14):
            c=14*RA+b*14+ks
            while nxt<min(c+10, tot): rd_x(nxt); nxt+=1
            mfma2(c, F_ACCB+b*8, ks, ks==0)
    CS=F_WF
    ST=F_WF+8
    T=F_WF+16
    k.e("s_nop 7")
    for r in range(8):
        k.e(f"v_mov_b32_dpp v{CS+r}, v{F_ACC+r} row_newbcast:0 row_mask:0xf bank_mask:0xf")
    k.e(f"""
    v_and_b32 v10, 15, v1
    v_lshlrev_b32 v11, 4, v10
    v_add_u32 v11, {STAT_LDS}, v11
    v_and_b32 v12, 31, v1
    v_lshlrev_b32 v12, 4, v12
    v_lshrrev_b32 v13, 5, v1
    v_mul_u32_u24 v13, {A2_VT}, v13
    v_add_u32 v12, v12, v13
    s_mul_i32 s56, s{S_J}, {11*A2_VT}
    s_lshl_b32 s57, s{S_CG}, 12
    s_add_u32 s56, s56, s57
    s_lshl_b32 s57, s{S_W}, 9
    s_add_u32 s56, s56, s57
    """)
    def accof(t): return F_ACC+t*8 if t<RA else F_ACCB+(t-RA)*8
    def epi_tile(t, st, dst):
        a=accof(t)
        for r in range(4):
            g=a+r; u=a+4+r; t0=T+4*r
            k.e(f"v_fmac_f32 v{g}, v{st}, v{CS+r}\nv_fmac_f32 v{u}, v{st}, v{CS+4+r}")
            k.e(f"v_mul_f32 v{t0}, v{g}, v{g}\nv_fma_f32 v{t0}, v{t0}, v{st+2}, v{st+1}\nv_mul_f32 v{t0}, v{t0}, v{g}\nv_exp_f32 v{t0}, v{t0}\nv_mul_f32 v{g}, v{g}, v{u}")
            k.e(f"v_fma_f32 v{t0}, v{t0}, v{st+3}, v{st+3}\nv_rcp_f32 v{t0}, v{t0}\ns_nop 0\nv_mul_f32 v{g}, v{g}, v{t0}")
        k.e(f"v_cvt_pk_bf16_f32 v{dst}, v{a}, v{a+1}\nv_cvt_pk_bf16_f32 v{dst+1}, v{a+2}, v{a+3}")
    NT=RA+RB
    for ta in range(0,NT,2):
        tb=ta+1
        O=T+16+(ta//2%2)*4
        k.e(f"ds_read_b128 v[{ST}:{ST+3}], v11 offset:{ta*256}")
        if tb<NT: k.e(f"ds_read_b128 v[{ST+4}:{ST+7}], v11 offset:{tb*256}")
        k.e("s_waitcnt lgkmcnt(0)")
        epi_tile(ta, ST, O)
        if tb<NT: epi_tile(tb, ST+4, O+2)
        k.e(f"s_nop 1\nv_permlane32_swap_b32 v{O}, v{O+2}\nv_permlane32_swap_b32 v{O+1}, v{O+3}")
        if tb>=NT: k.e("s_mov_b32 exec_hi, 0")
        k.e(f"s_add_u32 s57, s56, {ta*A2_VT}\nbuffer_store_dwordx4 v[{O}:{O+3}], v12, s[{SWS}:{SWS+3}], s57 offen sc0 sc1")
        if tb>=NT: k.e("s_mov_b64 exec, -1")
    k.e("s_branch k1_done")

A_ACC=16
A_H=A_ACC+72
A_XF=A_H+8
A_WF=A_XF+32
A_END=A_WF+64
AWOFF=26*1024
def gen_A(k):
    vq=Q(63); lq=Q(15)
    S_RG=S_J; S_HP=S_CG
    k.e(f"""
    k1_A:
    s_mul_i32 s60, s58, 11
    s_add_u32 s60, s60, s57
    s_sub_u32 s60, s60, 21
    s_lshr_b32 s{S_RG}, s60, 2
    s_and_b32 s60, s60, 3
    s_lshl_b32 s{S_HP}, s59, 2
    s_add_u32 s{S_HP}, s{S_HP}, s60
    s_mul_i32 s62, s{S_RG}, 192
    """)
    k.e(f"""
    v_lshrrev_b32 v10, 3, v1
    v_and_b32 v11, 7, v1
    v_lshrrev_b32 v12, 4, v1
    v_xor_b32 v13, v11, v12
    v_xor_b32 v14, 4, v13
    s_bitcmp1_b32 s{S_W}, 0
    s_cselect_b64 vcc, -1, 0
    v_cndmask_b32 v13, v13, v14, vcc
    s_lshl_b32 s60, s{S_W}, 3
    s_add_u32 s60, s60, s62
    s_sub_u32 s60, s60, 16
    v_add_u32 v10, s60, v10
    s_movk_i32 s61, 896
    v_mul_lo_u32 v4, v10, s61
    v_lshl_add_u32 v4, v13, 4, v4
    v_add_u32 v5, {64*896}, v4
    v_mov_b32 v14, 0x80000000
    v_cmp_gt_i32 vcc, 0, v10
    s_nop 1
    v_cndmask_b32 v4, v4, v14, vcc
    s_mov_b64 s[80:81], -1
    s_cmp_eq_u32 s{S_W}, 0
    s_cselect_b32 s80, 0xffffff00, s80
    """)
    def wvoff(dst, uadd):
        k.e(f"""
        s_lshl_b32 s60, s{S_W}, 6
        s_add_i32 s60, s60, {uadd*64}
        v_add_u32 v10, s60, v1
        s_mov_b32 s61, {(2**32+21)//22}
        v_mul_hi_u32 v11, v10, s61
        v_mul_u32_u24 v12, 22, v11
        v_sub_u32 v12, v10, v12
        v_and_b32 v13, 0x33, v11
        v_bfe_u32 v14, v11, 2, 1
        v_lshl_or_b32 v13, v14, 3, v13
        v_bfe_u32 v14, v11, 3, 1
        v_lshl_or_b32 v13, v14, 2, v13
        v_mul_u32_u24 v13, 2688, v13
        v_mul_u32_u24 v14, 37, v12
        v_lshrrev_b32 v14, 8, v14
        v_mul_u32_u24 v15, {896-112}, v14
        v_lshl_add_u32 v15, v12, 4, v15
        v_add_u32 v13, v13, v15
        s_mul_i32 s60, s{S_HP}, 112
        v_add_u32 v13, s60, v13
        v_mov_b32 v14, 0x80000000
        v_cmp_gt_u32 vcc, 21, v12
        s_nop 1
        v_cndmask_b32 v{dst}, v14, v13, vcc
        """)
    wvoff(6, -2); wvoff(2, 6); wvoff(3, 14)
    k.e(f"""
    v_add_u32 v10, {128*896}, v5
    s_cmp_lt_u32 s{S_W}, 2
    s_cselect_b64 vcc, -1, 0
    v_cndmask_b32 v6, v6, v10, vcc
    s_movk_i32 s65, 128
    s_cselect_b32 s65, s65, {64*2688}
    """)
    k.e(f"""
    s_lshr_b32 s66, s{S_W}, 1
    s_and_b32 s67, s{S_W}, 1
    s_mul_i32 s60, s66, {3*2048}
    """)
    x_read_addr(k, 7, 8)
    XO=A_END
    k.e(f"v_add_u32 v{XO}, s60, v7\nv_add_u32 v{XO+1}, s60, v8")
    k.e(f"""
    v_lshrrev_b32 v12, 2, v10
    v_and_b32 v13, 3, v10
    v_lshrrev_b32 v14, 1, v11
    v_lshl_add_u32 v12, v14, 4, v12
    v_and_b32 v14, 1, v11
    v_lshl_add_u32 v12, v14, 2, v12
    v_mul_u32_u24 v12, 352, v12
    s_mul_i32 s60, s67, 56
    s_add_u32 s60, s60, {AWOFF}
    v_add_u32 v12, s60, v12
    v_lshl_add_u32 v9, v13, 3, v12
    v_min_u32 v13, 2, v13
    v_lshl_add_u32 v{XO+2}, v13, 3, v12
    v_add_u32 v{XO+2}, 32, v{XO+2}
    """)
    k.e(f"""
    s_bitcmp1_b32 s66, 0
    s_cselect_b64 vcc, -1, 0
    v_cndmask_b32 v{XO+3}, v9, v{XO+2}, vcc
    v_add_u32 v{XO+4}, 224, v{XO+3}
    s_lshr_b32 s60, s66, 1
    s_mul_i32 s60, s60, 112
    v_add_u32 v{XO+3}, s60, v{XO+3}
    """)
    RADDR=[7,8,XO,XO+1,9,XO+2,XO+3,XO+4]
    ones_row(k, 10)
    k.e("s_waitcnt lgkmcnt(0)")
    srd(k, SX, 16, 17, XB); srd(k, SWA, 18, 19, 448*2688); srd(k, SWS, 34, 35, WS_BYTES)
    k.e(f"""
    s_cmp_lt_u32 s{S_W}, 2
    s_cselect_b32 s{SMIX}, s16, s18
    s_cselect_b32 s{SMIX+1}, s17, s19
    s_cselect_b32 s{SMIX+2}, s{SX+2}, s{SWA+2}
    s_mov_b32 s{SMIX+3}, 0x20000
    """)
    def dma(p, i):
        sl=(p%3)*SLOT+i*8192
        k.e(f"s_add_u32 m0, s{S_W1K}, {sl}")
        if i==0: k.e(f"s_movk_i32 s56, {p*128}\ns_mov_b64 exec, s[80:81]\nbuffer_load_dwordx4 v4, s[{SX}:{SX+3}], s56 offen lds\ns_mov_b64 exec, -1")
        elif i<3: k.e(f"s_mov_b32 s56, {p*128+(i-1)*64*896}\nbuffer_load_dwordx4 v5, s[{SX}:{SX+3}], s56 offen lds")
        elif i==3: k.e(f"s_mul_i32 s56, s65, {p}\nbuffer_load_dwordx4 v6, s[{SMIX}:{SMIX+3}], s56 offen lds")
        else: k.e(f"s_mov_b32 s56, {p*64*2688}\nbuffer_load_dwordx4 v{(2,3)[i-4]}, s[{SWA}:{SWA+3}], s56 offen lds")
        vq.issue(("S",p))
    def stage(p): return [ (lambda i=i: dma(p,i)) for i in range(6)]
    cur={"slot":0}
    def setslot(s):
        d=(s-cur["slot"])*SLOT
        if d:
            for r in RADDR: k.e(f"v_add_u32 v{r}, {d&0xffffffff}, v{r}")
        cur["slot"]=s
    def reads(ks):
        P=ks&1; L=[]
        def tr(fr, areg, off):
            b=A_WF+P*32+fr*4
            for h in range(2):
                L.append((f"ds_read_b64_tr_b16 v[{b+2*h}:{b+2*h+1}], v{areg} offset:{(ks&1)*32*352+off+h*8*352}", ("R",ks)))
        def xr(fr, areg, off):
            b=A_XF+P*16+fr*4
            L.append((f"ds_read_b128 v[{b}:{b+3}], v{areg} offset:{off}", ("R",ks)))
        xr(0, XO+(ks&1), 2048)
        for sec in range(3):
            tr(sec*2, 9, sec*112); tr(sec*2+1, XO+2, sec*112)
        xr(1, XO+(ks&1), 4096); xr(2, XO+(ks&1), 6144); xr(3, 7+(ks&1), 0)
        tr(6, XO+3, 0); tr(7, XO+4, 0)
        return L
    def mfmas(ks):
        P=ks&1; L=[]
        def mm(a, fr, xf, ct):
            w=A_WF+P*32+fr*4; x=A_XF+P*16+xf*4
            cc="0" if ks==0 else f"v[{a}:{a+3}]"
            A,B=(w,x) if ct else (x,w)
            L.append(f"v_mfma_f32_16x16x32_bf16 v[{a}:{a+3}], v[{A}:{A+3}], v[{B}:{B+3}], {cc}")
        for m in range(3):
            for t in range(6): mm(A_ACC+(m*6+t)*4, t, m, t<4)
        mm(A_H, 6, 3, True); mm(A_H+4, 7, 3, False)
        return L
    for f in stage(0): f()
    k.e(f"""
    v_add_u32 v10, s62, v0
    v_subrev_u32 v10, 16, v10
    v_cmp_gt_u32 s[84:85], {2048}, v10
    v_lshlrev_b32 v10, 4, v10
    v_add_u32 v10, {STATS_OFF}, v10
    buffer_load_dwordx2 v[14:15], v10, s[{SWS}:{SWS+3}], 0 offen sc0 sc1
    """.replace("v_cmp_gt_u32 s[84:85], 2048, v10","s_movk_i32 s56, 2048\nv_cmp_gt_u32 s[84:85], s56, v10")); vq.issue(("ST",))
    for f in stage(1)[:2]: f()
    n=vq.need(lambda t: t==("S",0))
    k.e(f"s_waitcnt vmcnt({n})\ns_barrier")
    R=reads(0)
    for i,(s,tag) in enumerate(R):
        k.e(s)
        if i==11: k.e("s_waitcnt lgkmcnt(0)")
    pend=stage(1)[2:]+stage(2)
    for ks in range(14):
        p=ks>>1
        if ks&1 and ks<13:
            n=vq.need(lambda t: t[0]=="S" and t[1]<=p+1)
            k.e(f"s_waitcnt vmcnt({n}) lgkmcnt(0)\ns_barrier")
            setslot((p+1)%3)
            if p+3<7: pend=pend+stage(p+3)
        else:
            k.e("s_waitcnt lgkmcnt(0)")
        if ks==3:
            k.e(f"""
            v_rcp_f32 v15, v15
            v_sub_f32 v14, 0, v14
            v_lshlrev_b32 v10, 2, v0
            v_add_u32 v10, {STAT_LDS}, v10
            v_cndmask_b32 v14, 0, v14, s[84:85]
            v_cndmask_b32 v15, 0, v15, s[84:85]
            v_cmp_gt_u32 vcc, 208, v0
            v_mov_b32 v11, {STAT_LDS+2048}
            s_nop 0
            v_cndmask_b32 v10, v11, v10, vcc
            ds_write2st64_b32 v10, v14, v15 offset0:0 offset1:4
            """)
        M=mfmas(ks); R=reads(ks+1) if ks<13 else []
        ri=0
        for mi,m in enumerate(M):
            k.e(m)
            cnt = 2 if mi<4 else 1
            did=False
            for _ in range(cnt):
                if ri<len(R) and ri<14+ (mi>=12)*20:
                    if ri==14: k.e("s_waitcnt lgkmcnt(8)")
                    k.e(R[ri][0]); ri+=1; did=True
            if not did and pend: pend.pop(0)()
            elif mi>=14 and pend: pend.pop(0)()
        while ri<len(R): k.e(R[ri][0]); ri+=1
        if ks&1==0 and ks>0:
            while pend: pend.pop(0)()
    assert not pend
    k.e("s_nop 7\ns_barrier")
    T=A_XF
    k.e(f"""
    v_lshlrev_b32 v2, 4, v1
    s_mul_i32 s60, s67, 6144
    s_lshl_b32 s61, s66, 10
    s_add_u32 s61, s61, s60
    v_add_u32 v3, s61, v2
    ds_write_b128 v3, v[{A_H}:{A_H+3}]
    s_and_b32 s61, s66, 1
    s_lshl_b32 s61, s61, 10
    s_add_u32 s61, s61, s60
    v_add_u32 v3, s61, v2
    ds_write_b128 v3, v[{A_H+4}:{A_H+7}] offset:4096
    s_lshl_b32 s61, s{S_W}, 12
    v_add_u32 v3, s61, v2
    """)
    for t in range(4):
        a=A_ACC+(2*6+2+t)*4
        k.e(f"ds_write_b128 v3, v[{a}:{a+3}] offset:{12288+t*1024}")
    k.e("s_waitcnt lgkmcnt(0)\ns_barrier")
    CSQ=T; CSK=T+8; CSV=T+16
    PK=T+20; PV=T+28
    NMU=T+36; RS=T+40
    NMV=T+44; RSV=T+60
    k.e(f"""
    v_lshrrev_b32 v3, 4, v1
    v_lshlrev_b32 v4, 8, v3
    v_add_u32 v4, s60, v4
    v_and_b32 v5, 15, v1
    v_lshlrev_b32 v6, 4, v5
    v_add_u32 v6, s60, v6
    ds_read_b128 v[{CSQ}:{CSQ+3}], v4
    ds_read_b128 v[{CSQ+4}:{CSQ+7}], v4 offset:1024
    ds_read_b128 v[{CSK}:{CSK+3}], v4 offset:2048
    ds_read_b128 v[{CSK+4}:{CSK+7}], v4 offset:3072
    ds_read_b32 v{CSV}, v6 offset:4096
    ds_read_b32 v{CSV+1}, v6 offset:5120
    s_add_u32 s61, s60, 2048
    s_lshl_b32 s63, s{S_W}, 12
    s_add_u32 s63, s63, {12288-8192}
    s_cmp_eq_u32 s66, 0
    s_cselect_b32 s61, s61, s63
    v_add_u32 v7, s61, v2
    ds_read_b128 v[{PK}:{PK+3}], v7
    ds_read_b128 v[{PK+4}:{PK+7}], v7 offset:1024
    ds_read_b128 v[{PV}:{PV+3}], v7 offset:2048
    ds_read_b128 v[{PV+4}:{PV+7}], v7 offset:3072
    s_mul_i32 s61, s66, {48*4}
    s_add_u32 s61, s61, {STAT_LDS}
    v_lshl_add_u32 v8, v5, 2, s61
    v_lshl_add_u32 v9, v3, 4, s61
    s_waitcnt lgkmcnt(0)
    """)
    for i in range(4):
        k.e(f"ds_read_b32 v{NMU+i}, v8 offset:{i*64}\nds_read_b32 v{RS+i}, v8 offset:{1024+i*64}")
    for i in range(3):
        k.e(f"ds_read_b128 v[{NMV+4*i}:{NMV+4*i+3}], v9 offset:{i*64}\nds_read_b128 v[{RSV+4*i}:{RSV+4*i+3}], v9 offset:{1024+i*64}")
    k.e("s_waitcnt lgkmcnt(0)")
    k.e(f"ds_read_b128 v[{NMV+12}:{NMV+15}], v9 offset:{192}\nds_read_b128 v[{RSV+12}:{RSV+15}], v9 offset:{1024+192}")
    SEL=XO+6
    k.e(f"""
    v_and_b32 v10, 1, v5
    v_cmp_eq_u32 s[86:87], 1, v10
    v_lshl_add_u32 v11, v3, 2, v10
    v_cmp_le_u32 s[88:89], v11, v5
    v_add_u32 v11, 2, v11
    v_cmp_le_u32 s[90:91], v11, v5
    v_cmp_eq_u32 s[92:93], 3, v3
    s_or_b32 s61, s{S_RG}, s66
    s_cmp_eq_u32 s61, 0
    s_cselect_b64 s[94:95], -1, 0
    v_mov_b32 v12, 0x0c0c0100
    v_mov_b32 v13, 0x01000c0c
    v_cndmask_b32 v12, v12, v13, s[86:87]
    v_mov_b32 v13, 0x0c0c0302
    v_mov_b32 v14, 0x03020c0c
    v_cndmask_b32 v13, v13, v14, s[86:87]
    v_mov_b32 v14, 0x0c0c0c0c
    v_cndmask_b32 v{SEL}, v12, v14, s[88:89]
    v_cndmask_b32 v{SEL+1}, v13, v14, s[90:91]
    v_cndmask_b32 v{SEL+2}, v14, v12, s[88:89]
    v_cndmask_b32 v{SEL+3}, v14, v13, s[90:91]
    s_waitcnt lgkmcnt(0)
    """)
    KF=XO+12
    QF=KF+16
    V0=QF+4
    V1=V0+8
    SS=V1+8
    PF=SS+8
    OO=T+76
    assert PF+4<=256
    def foldT(a, cs, i, dst):
        for r in range(8):
            k.e(f"v_fmac_f32 v{a+r}, v{NMU+i}, v{cs+r}\nv_mul_f32 v{a+r}, v{RS+i}, v{a+r}")
        for r in range(4): k.e(f"v_cvt_pk_bf16_f32 v{dst+r}, v{a+2*r}, v{a+2*r+1}")
    def foldV(a, i):
        for t in range(2):
            for r in range(4):
                k.e(f"v_fmac_f32 v{a+4*t+r}, v{NMV+4*i+r}, v{CSV+t}\nv_mul_f32 v{a+4*t+r}, v{RSV+4*i+r}, v{a+4*t+r}")
            d=(V0,V1)[t]+2*i
            k.e(f"v_cvt_pk_bf16_f32 v{d}, v{a+4*t}, v{a+4*t+1}\nv_cvt_pk_bf16_f32 v{d+1}, v{a+4*t+2}, v{a+4*t+3}")
    foldT(PK, CSK, 0, KF); foldV(PV, 0)
    CSC=1.0/math.sqrt(28.0)*math.log2(math.e)
    k.e(f"""
    s_mul_i32 s61, s66, 48
    s_add_u32 s61, s61, s62
    v_add_u32 v10, s61, v5
    s_lshl_b32 s63, s{S_HP}, 1
    s_add_u32 s63, s63, s67
    s_add_u32 s63, s63, 56
    s_lshl_b32 s63, s63, 10
    s_mov_b32 s68, {(2**32+174)//175}
    s_mov_b32 s69, {hex(f2u(CSC))}
    s_movk_i32 s70, 2048
    """)
    for m in range(3):
        a=A_ACC+m*24
        foldT(a, CSQ, m+1, QF)
        k.e(f"v_cndmask_b32 v{QF+2}, v{QF+2}, 0, s[92:93]\nv_cndmask_b32 v{QF+3}, v{QF+3}, 0, s[92:93]")
        foldT(a+8, CSK, m+1, KF+4*(m+1))
        k.e("s_nop 1")
        k.e(f"v_mfma_f32_16x16x32_bf16 v[{SS}:{SS+3}], v[{KF+4*m}:{KF+4*m+3}], v[{QF}:{QF+3}], 0")
        k.e(f"v_mfma_f32_16x16x32_bf16 v[{SS+4}:{SS+7}], v[{KF+4*m+4}:{KF+4*m+7}], v[{QF}:{QF+3}], 0")
        foldV(a+16, m+1)
        X=a
        k.e(f"""
        v_cndmask_b32 v{X}, v{SS}, v{SS+1}, s[86:87]
        v_cndmask_b32 v{X+1}, v{SS+2}, v{SS+3}, s[86:87]
        v_cndmask_b32 v{X+2}, v{SS+4}, v{SS+5}, s[86:87]
        v_cndmask_b32 v{X+3}, v{SS+6}, v{SS+7}, s[86:87]
        """)
        if m==0:
            k.e(f"v_mov_b32 v{X+4}, 0xff800000\nv_cndmask_b32 v{X}, v{X}, v{X+4}, s[94:95]\nv_cndmask_b32 v{X+1}, v{X+1}, v{X+4}, s[94:95]")
        k.e(f"""
        v_cndmask_b32 v{X}, v{X}, v{X+2}, s[88:89]
        v_cndmask_b32 v{X+1}, v{X+1}, v{X+3}, s[90:91]
        v_max_f32 v{X+2}, v{X}, v{X+1}
        v_mov_b32 v{X+3}, v{X+2}
        s_nop 1
        v_permlane16_swap_b32 v{X+2}, v{X+3}
        s_nop 1
        v_max_f32 v{X+2}, v{X+2}, v{X+3}
        v_mov_b32 v{X+3}, v{X+2}
        s_nop 1
        v_permlane32_swap_b32 v{X+2}, v{X+3}
        s_nop 1
        v_max_f32 v{X+2}, v{X+2}, v{X+3}
        v_sub_f32 v{X}, v{X}, v{X+2}
        v_sub_f32 v{X+1}, v{X+1}, v{X+2}
        v_mul_f32 v{X}, s69, v{X}
        v_mul_f32 v{X+1}, s69, v{X+1}
        v_exp_f32 v{X}, v{X}
        v_exp_f32 v{X+1}, v{X+1}
        s_nop 0
        v_add_f32 v{X+2}, v{X}, v{X+1}
        v_mov_b32 v{X+3}, v{X+2}
        s_nop 1
        v_permlane16_swap_b32 v{X+2}, v{X+3}
        s_nop 1
        v_add_f32 v{X+2}, v{X+2}, v{X+3}
        v_mov_b32 v{X+3}, v{X+2}
        s_nop 1
        v_permlane32_swap_b32 v{X+2}, v{X+3}
        s_nop 1
        v_add_f32 v{X+2}, v{X+2}, v{X+3}
        v_rcp_f32 v{X+2}, v{X+2}
        s_nop 0
        v_mul_f32 v{X}, v{X}, v{X+2}
        v_mul_f32 v{X+1}, v{X+1}, v{X+2}
        v_cvt_pk_bf16_f32 v{X}, v{X}, v{X+1}
        v_perm_b32 v{PF}, v{X}, v{X}, v{SEL}
        v_perm_b32 v{PF+1}, v{X}, v{X}, v{SEL+1}
        v_perm_b32 v{PF+2}, v{X}, v{X}, v{SEL+2}
        v_perm_b32 v{PF+3}, v{X}, v{X}, v{SEL+3}
        s_nop 1
        v_mfma_f32_16x16x32_bf16 v[{OO}:{OO+3}], v[{V0+2*m}:{V0+2*m+3}], v[{PF}:{PF+3}], 0
        v_mfma_f32_16x16x32_bf16 v[{OO+4}:{OO+7}], v[{V1+2*m}:{V1+2*m+3}], v[{PF}:{PF+3}], 0
        v_mul_hi_u32 v11, v10, s68
        v_mul_u32_u24 v12, 175, v11
        v_sub_u32 v12, v10, v12
        v_add_u32 v12, 1, v12
        v_mul_u32_u24 v11, 11, v11
        v_lshrrev_b32 v13, 4, v12
        v_add_u32 v11, v11, v13
        v_mul_u32_u24 v11, {A2_VT}, v11
        v_and_b32 v12, 15, v12
        v_lshl_add_u32 v11, v12, 4, v11
        v_lshl_add_u32 v11, v3, 8, v11
        v_cmp_gt_u32 vcc, s70, v10
        v_add_u32 v10, 16, v10
        v_mov_b32 v12, 0x80000000
        v_cndmask_b32 v11, v12, v11, vcc
        v_cvt_pk_bf16_f32 v{X+4}, v{OO}, v{OO+1}
        v_cvt_pk_bf16_f32 v{X+5}, v{OO+2}, v{OO+3}
        v_cvt_pk_bf16_f32 v{X+6}, v{OO+4}, v{OO+5}
        v_cvt_pk_bf16_f32 v{X+7}, v{OO+6}, v{OO+7}
        buffer_store_dwordx4 v[{X+4}:{X+7}], v11, s[{SWS}:{SWS+3}], s63 offen sc0 sc1
        """)

def gen_k1():
    k=K("k1")
    p1_setup(k)
    gen_F(k)
    gen_A(k)
    k.e("k1_done:")
    return kernel_text("k1_kernel", k.text(), 256, 96)

P_W=16
P_ACC=P_W+144
P_A=P_ACC+32
NRING=14
def gen_k2():
    k=K("k2")
    vq=Q(63); lq=Q(15)
    k.e("s_cmp_ge_u32 s2, 256\ns_cbranch_scc1 k2_done")
    load_ptrs(k)
    k.e(f"""
    v_lshrrev_b32 v2, 6, v0
    v_and_b32 v1, 63, v0
    s_and_b32 s56, s2, 7
    v_readfirstlane_b32 s{S_W}, v2
    s_lshr_b32 s57, s2, 3
    s_mul_i32 s58, s56, 21
    s_add_u32 s58, s58, s57
    s_mul_i32 s59, s56, 11
    s_add_u32 s59, s59, s57
    s_sub_u32 s59, s59, 21
    s_cmp_lt_u32 s57, 21
    s_cselect_b32 s58, s58, s59
    s_cselect_b32 s60, 4, 3
    s_cselect_b32 s61, 0, 96
    s_movk_i32 s62, 168
    s_cselect_b32 s62, s62, 77
    s_cmp_ge_u32 s58, s62
    s_cbranch_scc1 k2_done
    s_mul_i32 s59, s58, 293
    s_lshr_b32 s59, s59, 11
    s_mul_i32 s62, s59, 7
    s_sub_u32 s15, s58, s62
    s_mul_i32 s14, s59, s60
    s_add_u32 s14, s14, s61
    s_lshl_b32 s{S_W1K}, s{S_W}, 10
    """)
    k.e(f"""
    v_lshrrev_b32 v10, 3, v1
    v_and_b32 v11, 7, v1
    v_lshrrev_b32 v12, 4, v1
    v_lshlrev_b32 v12, 1, v12
    v_xor_b32 v11, v11, v12
    v_mul_u32_u24 v3, 896, v10
    v_lshl_add_u32 v3, v11, 4, v3
    s_lshl_b32 s56, s15, 7
    v_add_u32 v3, s56, v3
    v_mov_b32 v4, 0x80000000
    v_cmp_gt_u32 vcc, 4, v10
    s_nop 1
    v_cndmask_b32 v4, v4, v3, vcc
    """)
    k.e(f"""
    v_and_b32 v10, 15, v1
    v_lshrrev_b32 v11, 4, v1
    v_lshrrev_b32 v12, 2, v10
    v_and_b32 v13, 3, v10
    v_lshrrev_b32 v14, 1, v11
    v_lshl_add_u32 v12, v14, 4, v12
    v_and_b32 v14, 1, v11
    v_lshl_add_u32 v12, v14, 2, v12
    v_bfe_u32 v14, v12, 1, 2
    v_lshlrev_b32 v12, 7, v12
    v_lshl_add_u32 v12, v13, 3, v12
    s_mul_i32 s56, s{S_W}, {5*4096}
    v_add_u32 v12, s56, v12
    """)
    for T in range(4):
        k.e(f"v_xor_b32 v15, {T}, v14\nv_lshl_add_u32 v{5+T}, v15, 5, v12")
    k.e(f"""
    v_lshlrev_b32 v9, 4, v1
    s_mul_i32 s63, s14, {A2_VT}
    s_mul_i32 s64, s{S_W}, 7168
    s_add_u32 s64, s64, s63
    s_lshl_b32 s65, s{S_W}, 11
    s_add_u32 s65, s65, s63
    s_add_u32 s65, s65, {56*1024}
    s_mul_i32 s66, s{S_W}, {7*32*896}
    s_mul_i32 s67, s{S_W}, {2*28*896}
    s_mul_i32 s68, s{S_W}, {5*4096}
    s_waitcnt lgkmcnt(0)
    """)
    SWO=SWA; SWD=SWB; SOUT=SMIX
    srd(k, SX, 16, 17, XB); srd(k, SWO, 20, 21, 448*896); srd(k, SWD, 28, 29, 1792*896); srd(k, SWS, 34, 35, WS_BYTES); srd(k, SOUT, 30, 31, XB)
    def dma_w2(i, pos):
        for q in range(4):
            k.e(f"s_add_u32 m0, s68, {pos*4096+q*1024}")
            if i<7:
                k.e(f"s_add_u32 s56, s66, {(32*i+8*q)*896}\nbuffer_load_dwordx4 v3, s[{SWD}:{SWD+3}], s56 offen lds")
            else:
                d0=(0,16,8,24)[q]
                k.e(f"s_add_u32 s56, s67, {(28*(i-7)+d0)*896}\nbuffer_load_dwordx4 v{4 if q==3 else 3}, s[{SWO}:{SWO+3}], s56 offen lds")
            vq.issue(("W2",i))
    def tr_w2(i, pos):
        for T in range(4):
            for h in range(2):
                b=P_W+(i*4+T)*4+2*h
                k.e(f"ds_read_b64_tr_b16 v[{b}:{b+1}], v{5+T} offset:{pos*4096+h*1024}")
    def ld_a(c):
        m,i=divmod(c,9)
        b=P_A+(c%NRING)*4
        if i<7: k.e(f"s_add_u32 s56, s64, {m*A2_VT+(i//4)*4096}\nbuffer_load_dwordx4 v[{b}:{b+3}], v9, s[{SWS}:{SWS+3}], s56 offen offset:{(i%4)*1024} sc0 sc1")
        else:   k.e(f"s_add_u32 s56, s65, {m*A2_VT}\nbuffer_load_dwordx4 v[{b}:{b+3}], v9, s[{SWS}:{SWS+3}], s56 offen offset:{(i-7)*1024} sc0 sc1")
        vq.issue(("A",c))
    for i in range(5): dma_w2(i,i)
    k.e(f"""
    s_lshr_b32 s69, s{S_W}, 1
    s_add_u32 s70, s14, s69
    s_lshl_b32 s70, s70, 4
    s_and_b32 s71, s{S_W}, 1
    s_lshl_b32 s71, s71, 3
    s_add_u32 s70, s70, s71
    v_lshrrev_b32 v10, 3, v1
    v_add_u32 v10, s70, v10
    s_mov_b32 s72, {(2**32+175)//176}
    v_mul_hi_u32 v11, v10, s72
    v_mul_u32_u24 v12, 176, v11
    v_sub_u32 v12, v10, v12
    v_sub_u32 v10, v10, v11
    v_subrev_u32 v10, 1, v10
    v_cmp_lt_u32 vcc, 0, v12
    s_mov_b64 s[80:81], vcc
    s_movk_i32 s72, 2048
    v_cmp_gt_u32 vcc, s72, v10
    s_and_b64 s[80:81], s[80:81], vcc
    s_cmp_lt_u32 s69, s60
    s_cselect_b64 s[82:83], -1, 0
    s_and_b64 s[80:81], s[80:81], s[82:83]
    v_mul_u32_u24 v10, 896, v10
    v_and_b32 v11, 7, v1
    v_lshl_add_u32 v10, v11, 4, v10
    s_lshl_b32 s56, s15, 7
    v_add_u32 v10, s56, v10
    v_mov_b32 v11, 0x80000000
    v_cndmask_b32 v2, v11, v10, s[80:81]
    buffer_load_dwordx4 v[248:251], v2, s[{SX}:{SX+3}], 0 offen
    """); vq.issue(("X",))
    n=vq.need(lambda t: t[0]=="W2"); k.e(f"s_waitcnt vmcnt({n})")
    for i in range(4): tr_w2(i,i); k.e("s_waitcnt lgkmcnt(0)")
    for i in range(5,9): dma_w2(i,i-5)
    tr_w2(4,4)
    nxt=0
    for _ in range(NRING): ld_a(nxt); nxt+=1
    n=vq.need(lambda t: t[0]=="W2"); k.e(f"s_waitcnt vmcnt({n}) lgkmcnt(0)")
    for i in range(5,9): tr_w2(i,i-5); k.e("s_waitcnt lgkmcnt(0)")
    k.e("s_barrier")
    k.e(f"""
    v_and_b32 v10, 15, v1
    v_lshrrev_b32 v11, 4, v1
    v_lshrrev_b32 v12, 1, v11
    v_lshlrev_b32 v12, 1, v12
    v_xor_b32 v10, v10, v12
    v_lshlrev_b32 v11, 8, v11
    s_lshl_b32 s56, s{S_W}, 14
    v_add_u32 v11, s56, v11
    """)
    for T in range(4):
        k.e(f"v_xor_b32 v12, {4*T}, v10\nv_lshl_add_u32 v{5+T}, v12, 4, v11\nv_add_u32 v{5+T}, {T*1024}, v{5+T}")
    for m in range(4):
        if m==3: k.e("s_cmp_lt_u32 s60, 4\ns_cbranch_scc1 k2_red")
        acc=P_ACC+(m&1)*16
        for i in range(9):
            c=m*9+i
            n=vq.need(lambda t: t==("A",c))
            k.e(f"s_waitcnt vmcnt({n})")
            b=P_A+(c%NRING)*4
            for T in range(4):
                a=acc+T*4; w=P_W+(i*4+T)*4
                cc="0" if i==0 else f"v[{a}:{a+3}]"
                k.e(f"v_mfma_f32_16x16x32_bf16 v[{a}:{a+3}], v[{w}:{w+3}], v[{b}:{b+3}], {cc}")
            if nxt<36: ld_a(nxt); nxt+=1
        k.e("s_nop 7")
        for T in range(4):
            k.e(f"ds_write_b128 v{5+T}, v[{acc+T*4}:{acc+T*4+3}] offset:{m*4096}")
    k.e("k2_red:")
    k.e(f"""
    v_lshrrev_b32 v10, 3, v1
    v_add_u32 v10, s71, v10
    v_and_b32 v11, 7, v1
    v_lshlrev_b32 v12, 1, v11
    v_xor_b32 v10, v10, v12
    v_lshlrev_b32 v11, 9, v11
    v_lshl_add_u32 v10, v10, 4, v11
    s_lshl_b32 s56, s69, 12
    v_add_u32 v10, s56, v10
    v_add_u32 v11, 0x10000, v10
    s_waitcnt vmcnt(0) lgkmcnt(0)
    s_barrier
    """)
    RB0=16
    for sw in range(8):
        for e in range(2):
            b=RB0+(sw*2+e)*4
            k.e(f"ds_read_b128 v[{b}:{b+3}], v{10+(sw>>2)} offset:{(sw&3)*16384+e*256}")
        if sw==6: k.e("s_waitcnt lgkmcnt(10)")
    k.e("""
    v_lshlrev_b32 v100, 16, v248
    v_and_b32 v101, 0xffff0000, v248
    v_lshlrev_b32 v102, 16, v249
    v_and_b32 v103, 0xffff0000, v249
    v_lshlrev_b32 v104, 16, v250
    v_and_b32 v105, 0xffff0000, v250
    v_lshlrev_b32 v106, 16, v251
    v_and_b32 v107, 0xffff0000, v251
    """)
    for sw in range(8):
        k.e(f"s_waitcnt lgkmcnt({14-2*sw})")
        for j in range(8):
            k.e(f"v_add_f32 v{100+j}, v{100+j}, v{RB0+sw*8+j}")
    for j in range(4): k.e(f"v_cvt_pk_bf16_f32 v{108+j}, v{100+2*j}, v{101+2*j}")
    k.e(f"buffer_store_dwordx4 v[108:111], v2, s[{SOUT}:{SOUT+3}], 0 offen")
    k.e("k2_done:")
    return kernel_text("k2_kernel", k.text(), 256, 96)

HEADER=open("parallel_sum__sliding_local_dilated__geglu_ffn__prompt.s.ref").read().split("; Override launch")[0]
if __name__=="__main__":
    out=sys.argv[1] if len(sys.argv)>1 else "v1.s"
    txt=file_text([("k0_kernel",256,512,0),("k1_kernel",256,512,LDS_BYTES),("k2_kernel",256,512,163840)],[gen_k0(),gen_k1(),gen_k2()],HEADER)
    open(out,"w").write(txt)
    print(out, len(txt))
```

```python
import gen
from asmlib import *
e=kernel_text("e_kernel","    s_nop 0",8,16)
ks=[gen.gen_k0(),gen.gen_k1(),gen.gen_k2(),e]
base=[("k0_kernel",256,512,0),("k1_kernel",256,512,gen.LDS_BYTES),("k2_kernel",256,512,163840)]
E=("e_kernel",256,64,0)
for name,L in [("va",base+[E]),("vb",base+[E]*3),("vc",[E]+base),("vd",base[:1]+base),("ve",base+base[2:])]:
    open(name+".s","w").write(file_text(L,ks,gen.HEADER))
```

```python
import sys, math, os, struct
from asmlib import *
def env(n,d): return type(d)(os.environ.get(n,d))
STAMPS=env("STAMPS",0); KST=env("KST",0); STW=env("STW",7)
ROT_A=env("ROT_A",1); ROT_F=env("ROT_F",0); ROT2=env("ROT2",1); PRIO=env("PRIO",1)
F_PRO=env("F_PRO",3); F_BUD=env("F_BUD",4); A_PRO=env("A_PRO",9); A_BUD=env("A_BUD",4)
TRW=env("TRW",1)
T1=env("T1",0)
T2KS=env("T2KS",-1)
LDF=os.environ.get("LDF","sc1"); STF=os.environ.get("STF","sc1")
KNAME="parallel_sum__sliding_local_dilated__geglu_ffn__prompt_kernel"

NKS=72; A2_VT=NKS*1024
STATS_OFF=10*1024*1024; FLAG_OFF=STATS_OFF+65536; AFLAG_OFF=FLAG_OFF+8192
STAMP_OFF=32*1024*1024; WS_BYTES=0x10000000; XB=2048*896
OOB=0x80000000; LDS_BYTES=153600
C0=-2.0*math.sqrt(2.0/math.pi)*math.log2(math.e); C1=C0*0.044715
def f2u(x): return struct.unpack("<I",struct.pack("<f",x))[0]
SPIN=1<<15

class Q:
    def __init__(s, mx=63): s.q=[]; s.mx=mx
    def issue(s, tag): s.q.append(tag)
    def need(s, pred):
        last=-1
        for i,t in enumerate(s.q):
            if pred(t): last=i
        if last<0: return None
        n=len(s.q)-1-last; s.q=s.q[last+1:]
        return min(n, s.mx)
class Both:
    def __init__(s,a,b): s.a=a; s.b=b
    def issue(s,t): s.a.issue(t); s.b.issue(t)
    def need(s,p):
        c=[v for v in (s.a.need(p), s.b.need(p)) if v is not None]
        if not c: return None
        n=min(c)
        s.a.q=s.a.q[max(0,len(s.a.q)-n):] if n else []
        s.b.q=s.b.q[max(0,len(s.b.q)-n):] if n else []
        return n
def vwait(k, vq, pred, extra=""):
    n=vq.need(pred)
    if n is not None: k.e(f"s_waitcnt vmcnt({n}) {extra}")
    elif extra: k.e(f"s_waitcnt {extra}")

S_W=12; S_W1K=13; S_J=14; S_CG=15
SX=36; SWA=40; SWB=44; SWS=48; SMIX=52; SDBG=96
S_NON=68; S_PJ=70; S_CT=71; S_T0=72; S_ROT=76
G4=12; TT=240; VH=244; VO=245; VT=246; VPA=247; VGA=248; VGL=249; VOA=250; VDUM=251; ZST=224
def srd(k, d, lo, hi, size):
    k.e(f"s_mov_b32 s{d}, s{lo}\ns_mov_b32 s{d+1}, s{hi}\ns_mov_b32 s{d+2}, {size}\ns_mov_b32 s{d+3}, 0x20000")
def stamp(k, i):
    if STAMPS: k.e(f"s_memrealtime s[100:101]\ns_waitcnt lgkmcnt(0)\nv_writelane_b32 v0, s100, {i}\ns_memtime s[100:101]\ns_waitcnt lgkmcnt(0)\nv_writelane_b32 v0, s100, {32+i}")
def stamp_out(k):
    if not STAMPS: return
    lab=k.lab("so")
    k.e(f"s_cmp_lg_u32 s{S_W}, {STW}\ns_cbranch_scc1 {lab}\ns_lshl_b32 s56, s2, 8\ns_add_u32 s56, s56, {STAMP_OFF}\nv_lshlrev_b32 v2, 2, v1")
    k.e(f"buffer_store_dword v0, v2, s[{SWS}:{SWS+3}], s56 offen\n{lab}:")

def allsum(k, v, t):
    for mod in ["quad_perm:[1,0,3,2]","quad_perm:[2,3,0,1]","row_half_mirror","row_mirror"]:
        k.e(f"s_nop 1\nv_add_f32_dpp v{v}, v{v}, v{v} {mod} row_mask:0xf bank_mask:0xf")
    for sw in ["v_permlane16_swap_b32","v_permlane32_swap_b32"]:
        k.e(f"v_mov_b32 v{t}, v{v}\ns_nop 1\n{sw} v{v}, v{t}\ns_nop 1\nv_add_f32 v{v}, v{v}, v{t}")
def rbf16(k, v): k.e(f"v_cvt_pk_bf16_f32 v{v}, v{v}, v{v}\nv_lshlrev_b32 v{v}, 16, v{v}")
def stats_compute(k, d, t):
    u=t+2
    for i in range(4): k.e(f"v_lshlrev_b32 v{u+2*i}, 16, v{d+i}\nv_and_b32 v{u+2*i+1}, 0xffff0000, v{d+i}")
    k.e(f"v_add_f32 v{t}, v{u}, v{u+1}\nv_add_f32 v{t+1}, v{u+2}, v{u+3}\nv_add_f32 v{d}, v{u+4}, v{u+5}\nv_add_f32 v{d+1}, v{u+6}, v{u+7}\nv_add_f32 v{t}, v{t}, v{t+1}\nv_add_f32 v{d}, v{d}, v{d+1}\nv_add_f32 v{t}, v{t}, v{d}")
    allsum(k, t, u+8)
    k.e(f"v_mul_f32 v{t}, {hex(f2u(1.0/448))}, v{t}\nv_cmp_gt_u32 vcc, 56, v1")
    for i in range(8): k.e(f"v_sub_f32 v{u+i}, v{u+i}, v{t}")
    k.e(f"v_mul_f32 v{t+1}, v{u}, v{u}\nv_mul_f32 v{d}, v{u+1}, v{u+1}")
    for i in range(2,8,2): k.e(f"v_fmac_f32 v{t+1}, v{u+i}, v{u+i}\nv_fmac_f32 v{d}, v{u+i+1}, v{u+i+1}")
    k.e(f"v_add_f32 v{t+1}, v{t+1}, v{d}\nv_cndmask_b32 v{t+1}, 0, v{t+1}, vcc")
    allsum(k, t+1, u+8)
    k.e(f"v_mul_f32 v{t+1}, {hex(f2u(1.0/448))}, v{t+1}")
    rbf16(k, t); rbf16(k, t+1)
    k.e(f"v_add_f32 v{t+1}, {hex(f2u(1e-5))}, v{t+1}")
    rbf16(k, t+1)
    k.e(f"v_sqrt_f32 v{t+1}, v{t+1}\ns_nop 0")
    rbf16(k, t+1)

def st_row_load(k, vq):
    D=ZST
    k.e(f"s_mov_b32 exec_hi, 0x00ffffff\nbuffer_load_dwordx4 v[{D}:{D+3}], v{D+4}, s[{SX}:{SX+3}], s61 offen\ns_mov_b32 exec_hi, -1"); vq.issue(("ROW",))
def st_nonce_load(k, vq):
    k.e(f"v_mov_b32 v{G4+2}, 0\nbuffer_load_dwordx2 v[{G4}:{G4+1}], v{G4+2}, s[{SDBG}:{SDBG+3}], 0 offen sc0 sc1"); vq.issue(("NON",))
def st_publish(k, vq):
    D=ZST; a=k.lab("nok"); b=k.lab("nsp")
    vwait(k, vq, lambda t: t==("NON",))
    k.e(f"""
    v_readfirstlane_b32 s{S_NON}, v{G4}
    v_readfirstlane_b32 s{S_NON+1}, v{G4+1}
    s_cmp_lg_u32 s{S_NON}, 0
    s_cbranch_scc1 {a}
    s_mov_b32 s57, 0
    {b}:
    s_sleep 2
    buffer_load_dwordx2 v[{G4}:{G4+1}], v{G4+2}, s[{SDBG}:{SDBG+3}], 0 offen sc0 sc1
    s_add_u32 s57, s57, 1
    s_waitcnt vmcnt(0)
    v_readfirstlane_b32 s{S_NON}, v{G4}
    v_readfirstlane_b32 s{S_NON+1}, v{G4+1}
    s_cmp_lg_u32 s{S_NON}, 0
    s_cbranch_scc1 {a}
    s_cmp_lt_u32 s57, {SPIN}
    s_cbranch_scc1 {b}
    {a}:
    s_lshl_b32 s56, s2, 3
    s_add_u32 s56, s56, s{S_W}
    s_lshl_b32 s56, s56, 4
    s_add_u32 s56, s56, {STATS_OFF}
    v_mov_b32 v{D+6}, s{S_NON}
    v_mov_b32 v{D+7}, s{S_NON+1}
    s_mov_b64 exec, 1
    buffer_store_dwordx4 v[{D+4}:{D+7}], v{G4+2}, s[{SWS}:{SWS+3}], s56 offen sc0 sc1
    s_mov_b64 exec, -1
    """); vq.issue(("PUB",))
def st_gran_load(k, vq):
    k.e(f"buffer_load_dwordx4 v[{G4}:{G4+3}], v{VGA}, s[{SWS}:{SWS+3}], 0 offen sc0 sc1"); vq.issue(("GR",))
def st_gran_check(k, vq):
    a=k.lab("gok"); b=k.lab("gsp")
    vwait(k, vq, lambda t: t==("GR",))
    k.e(f"""
    v_cmp_ne_u64 vcc, s[{S_NON}:{S_NON+1}], v[{G4+2}:{G4+3}]
    s_and_b64 vcc, vcc, s[84:85]
    s_cbranch_scc0 {a}
    s_mov_b32 s57, 0
    {b}:
    s_sleep 2
    buffer_load_dwordx4 v[{G4}:{G4+3}], v{VGA}, s[{SWS}:{SWS+3}], 0 offen sc0 sc1
    s_add_u32 s57, s57, 1
    s_waitcnt vmcnt(0)
    v_cmp_ne_u64 vcc, s[{S_NON}:{S_NON+1}], v[{G4+2}:{G4+3}]
    s_and_b64 vcc, vcc, s[84:85]
    s_cbranch_scc0 {a}
    s_cmp_lt_u32 s57, {SPIN}
    s_cbranch_scc1 {b}
    {a}:
    """)

def rot_setup(k, a, b, on):
    if not on: k.e("s_mov_b32 s3, -1"); return
    k.e(f"""
    s_add_u32 s3, s{a}, s{b}
    s_mul_i32 s10, s3, 86
    s_lshr_b32 s10, s10, 8
    s_mul_i32 s10, s10, 3
    s_sub_u32 s3, s3, s10
    s_lshl_b32 s10, s3, 1
    s_cmp_eq_u32 s3, 2
    s_cselect_b32 s3, 5, s10
    s_sub_u32 s3, s3, 1
    """)
def x_read_addr(k, d0, d1, t):
    k.e(f"""
    v_and_b32 v{t}, 15, v1
    v_lshrrev_b32 v{t+1}, 4, v1
    v_lshrrev_b32 v{t+2}, 1, v{t}
    v_xor_b32 v{t+3}, v{t+1}, v{t+2}
    v_xor_b32 v{t+4}, 4, v{t+3}
    v_lshlrev_b32 v{t+2}, 7, v{t}
    v_lshl_add_u32 v{d0}, v{t+3}, 4, v{t+2}
    v_lshl_add_u32 v{d1}, v{t+4}, 4, v{t+2}
    """)

def touch1(k, vq):
    if not T1: return
    tab=[(28,49,1792*896),(20,13,448*896)]
    if T1>=2: tab+=[(24,49,448*3584),(26,49,448*3584),(18,37,448*2688),(16,56,XB)]
    lab=k.lab("t1")
    k.e(f"s_mov_b32 s58, 0\ns_mov_b32 s{SMIX+3}, 0x20000\ns_mov_b32 s{SMIX}, s28\ns_mov_b32 s{SMIX+1}, s29\ns_mov_b32 s{SMIX+2}, 0")
    for w,(p,n,sz) in enumerate(tab):
        k.e(f"s_cmp_eq_u32 s{S_W}, {7-w}\ns_cselect_b32 s{SMIX}, s{p}, s{SMIX}\ns_cselect_b32 s{SMIX+1}, s{p+1}, s{SMIX+1}\ns_cselect_b32 s{SMIX+2}, {sz}, s{SMIX+2}\ns_cselect_b32 s58, {n}, s58")
    k.e(f"""
    s_mul_i32 s59, s58, s2
    s_lshl_b32 s59, s59, 7
    v_cmp_gt_u32 vcc, s58, v1
    v_lshlrev_b32 v{VDUM}, 7, v1
    v_mov_b32 v16, {OOB}
    v_cndmask_b32 v16, v16, v{VDUM}, vcc
    buffer_load_dword v{VDUM}, v16, s[{SMIX}:{SMIX+3}], s59 offen
    """); vq.issue(("T1",))

def w2_setup(k, t, cls):
    k.e(f"""
    v_lshrrev_b32 v{t}, 3, v1
    v_and_b32 v{t+1}, 7, v1
    v_lshrrev_b32 v{t+2}, 4, v1
    v_lshlrev_b32 v{t+3}, 1, v{t+2}
    v_xor_b32 v{t+1}, v{t+1}, v{t+3}
    v_mul_u32_u24 v{VH}, 896, v{t}
    v_lshl_add_u32 v{VH}, v{t+1}, 4, v{VH}
    s_lshl_b32 s56, s{S_CT}, 7
    v_add_u32 v{VH}, s56, v{VH}
    v_mov_b32 v{t+1}, {OOB}
    v_cmp_gt_u32 vcc, 4, v{t}
    s_mul_i32 s78, s{S_W}, {7*32*896}
    s_mul_i32 s79, s{S_W}, {2*28*896}
    v_cndmask_b32 v{VO}, v{t+1}, v{VH}, vcc
    v_bfe_u32 v{t}, v1, 2, 2
    v_lshl_add_u32 v{t}, v{t+2}, 2, v{t}
    v_bfe_u32 v{t+1}, v{t}, 1, 2
    v_lshlrev_b32 v{t}, 7, v{t}
    v_and_b32 v{t+2}, 3, v1
    v_lshl_add_u32 v{t}, v{t+2}, 3, v{t}
    v_lshl_add_u32 v{VT}, v{t+1}, 5, v{t}
    s_lshl_b32 s56, s{S_W}, 12
    v_add_u32 v{VT}, s56, v{VT}
    """)
    if ROT2: k.e(f"s_lshl_b32 s{S_ROT}, s{cls}, 1\ns_add_u32 s{S_ROT}, s{S_ROT}, s{S_CT}\ns_sub_u32 s56, s{S_ROT}, 7\ns_cmp_ge_u32 s{S_ROT}, 7\ns_cselect_b32 s{S_ROT}, s56, s{S_ROT}")
    else: k.e(f"s_mov_b32 s{S_ROT}, 0")
    k.e(f"s_sub_u32 s77, s{S_ROT}, 1")
def area_base(k, sd, lo, hi):
    k.e(f"s_mov_b32 s{sd}, {lo}\ns_cmp_ge_u32 s{S_W}, 4\ns_cselect_b32 s{sd}, {hi-16384}, s{sd}")
def w2_dma(k, vq, i, base, sd, so):
    def one(q):
        pre=""
        if q==0:
            if i<7: pre=f"s_add_u32 s77, s77, 1\ns_cmp_eq_u32 s77, 7\ns_cselect_b32 s77, 0, s77\ns_mul_i32 s67, s77, {32*896}\ns_add_u32 s67, s67, s78\n"
            else:   pre=f"s_add_u32 s67, s79, {28*(i-7)*896}\n"
            pre+=f"s_lshl_b32 s9, s{S_W}, 12\ns_add_u32 s9, s9, {base}\n"
        v=VO if (i>=7 and q==3) else VH; srdn=sd if i<7 else so
        k.e(f"{pre}s_add_u32 m0, s9, {q*1024}\ns_add_u32 s56, s67, {q*8*896}\nbuffer_load_dwordx4 v{v}, s[{srdn}:{srdn+3}], s56 offen lds")
        vq.issue(("W2",i))
    return [ (lambda q=q: one(q)) for q in range(4)]
def w2_tr(k, vq, i, base, tmp, Z):
    vwait(k, vq, lambda t: t==("W2",i), "lgkmcnt(7)")
    k.e(f"v_add_u32 v{tmp}, {base}, v{VT}")
    for T in range(1,4): k.e(f"v_xor_b32 v{tmp+T}, {T*32}, v{tmp}")
    for T in range(4):
        for h in range(2): k.e(f"ds_read_b64_tr_b16 v[{Z+4*T+2*h}:{Z+4*T+2*h+1}], v{tmp+T} offset:{h*2048}")

def p2_addr(k, nm, t):
    k.e(f"s_mul_i32 s56, s{S_PJ}, 11")
    for i in range(4): k.e(f"s_add_u32 s{S_T0+i}, s56, s{92+i}\ns_mul_i32 s{S_T0+i}, s{S_T0+i}, {A2_VT}")
    k.e(f"""
    v_and_b32 v{t}, 15, v1
    v_min_u32 v{VPA}, 13, v{t}
    v_lshlrev_b32 v{VPA}, 3, v{VPA}
    s_lshl_b32 s56, s{S_PJ}, 7
    s_add_u32 s56, s56, {FLAG_OFF}
    v_add_u32 v{VPA}, s56, v{VPA}
    s_mul_i32 s56, s{S_PJ}, 174
    s_mul_i32 s57, s56, 342
    s_lshr_b32 s57, s57, 16
    s_add_u32 s58, s56, 173
    s_min_u32 s58, s58, 2047
    s_mul_i32 s58, s58, 342
    s_lshr_b32 s58, s58, 16
    s_cmp_lg_u32 s58, s57
    s_cselect_b32 s58, 15, 7
    v_min_u32 v{t}, s58, v{t}
    s_lshl_b32 s58, s57, 6
    s_add_u32 s58, s58, {AFLAG_OFF}
    v_lshl_add_u32 v{t}, v{t}, 3, s58
    v_cmp_lt_u32 vcc, 15, v1
    s_lshr_b32 s58, s{S_W}, 1
    s_and_b32 s59, s{S_W}, 1
    v_cndmask_b32 v{VPA}, v{VPA}, v{t}, vcc
    s_lshl_b32 s59, s59, 3
    s_cmp_eq_u32 s58, 1
    s_cselect_b32 s60, s93, s92
    s_cmp_eq_u32 s58, 2
    s_cselect_b32 s60, s94, s60
    s_cmp_eq_u32 s58, 3
    s_cselect_b32 s60, s95, s60
    s_lshl_b32 s60, s60, 4
    s_add_u32 s60, s60, s59
    v_lshrrev_b32 v{VOA}, 3, v1
    v_add_u32 v{VOA}, s60, v{VOA}
    v_cmp_lt_u32 vcc, 95, v{VOA}
    v_cmp_ne_u32 s[60:61], 0, v{VOA}
    s_movk_i32 s59, 96
    v_cmp_ne_u32 s[86:87], s59, v{VOA}
    v_subbrev_co_u32 v{VOA}, vcc, 1, v{VOA}, vcc
    s_and_b64 s[60:61], s[60:61], s[86:87]
    v_add_u32 v{VOA}, s56, v{VOA}
    s_cmp_lt_u32 s58, {nm}
    s_cselect_b64 s[86:87], -1, 0
    s_and_b64 s[60:61], s[60:61], s[86:87]
    v_mul_u32_u24 v{VOA}, 896, v{VOA}
    v_and_b32 v{t}, 7, v1
    v_lshl_add_u32 v{VOA}, v{t}, 4, v{VOA}
    s_lshl_b32 s56, s{S_CT}, 7
    v_add_u32 v{VOA}, s56, v{VOA}
    v_mov_b32 v{t}, {OOB}
    v_cndmask_b32 v{VOA}, v{t}, v{VOA}, s[60:61]
    """)

def flag_store(k, soff):
    k.e(f"""
    v_mov_b32 v2, s{S_NON}
    v_mov_b32 v3, s{S_NON+1}
    v_mov_b32 v4, 0
    s_mov_b64 exec, 1
    buffer_store_dwordx2 v[2:3], v4, s[{SWS}:{SWS+3}], s{soff} offen sc0 sc1
    s_mov_b64 exec, -1
    """)

def gen_P2(k, vq, nm, WF, fin, ACC, RING, otag, soff):
    PV=2; AV=5; OA=6; PA=7; WA=8
    vwait(k, vq, lambda t: t==otag)
    k.e("s_barrier")
    stamp(k,4)
    l1=k.lab("w0")
    k.e(f"v_mov_b32 v{OA}, v{VOA}\nv_mov_b32 v{PA}, v{VPA}\ns_cmp_lg_u32 s{S_W}, 0\ns_cbranch_scc1 {l1}")
    flag_store(k, soff)
    k.e(f"{l1}:")
    k.e(f"buffer_load_dwordx4 v[{G4}:{G4+3}], v{OA}, s[{SX}:{SX+3}], 0 offen"); vq.issue(("XR",))
    fin()
    stamp(k,29)
    a=k.lab("pok"); b=k.lab("psp")
    k.e(f"""
    s_cmp_lg_u32 s{S_W}, 0
    s_cbranch_scc1 {a}
    s_mov_b32 s57, 0
    s_mov_b32 exec_hi, 0
    {b}:
    buffer_load_dwordx2 v[{PV}:{PV+1}], v{PA}, s[{SWS}:{SWS+3}], 0 offen sc0 sc1
    s_add_u32 s57, s57, 1
    s_waitcnt vmcnt(0)
    v_cmp_ne_u64 vcc, s[{S_NON}:{S_NON+1}], v[{PV}:{PV+1}]
    s_cmp_eq_u64 vcc, 0
    s_cbranch_scc1 {a}
    s_sleep 4
    s_cmp_lt_u32 s57, {SPIN}
    s_cbranch_scc1 {b}
    {a}:
    s_mov_b32 exec_hi, -1
    v_lshlrev_b32 v{AV}, 4, v1
    s_mul_i32 s64, s{S_W}, 7168
    s_add_u32 s66, s64, 7168
    s_lshl_b32 s65, s{S_ROT}, 10
    s_add_u32 s65, s65, s64
    s_sub_u32 s65, s65, 1024
    s_lshl_b32 s63, s{S_W}, 11
    s_add_u32 s63, s63, {56*1024}
    s_waitcnt lgkmcnt(0)
    s_barrier
    """)
    stamp(k,5)
    seq=[(m,i) for i in range(7) for m in range(nm)]+[(m,i) for m in range(nm) for i in (7,8)]
    NR=len(RING)
    def ld(c):
        m,i=seq[c]; b=RING[c%NR]
        if i<7:
            if m==0: k.e("s_add_u32 s65, s65, 1024\ns_cmp_eq_u32 s65, s66\ns_cselect_b32 s65, s64, s65")
            k.e(f"s_add_u32 s56, s{S_T0+m}, s65\nbuffer_load_dwordx4 v[{b}:{b+3}], v{AV}, s[{SWS}:{SWS+3}], s56 offen {LDF}")
        else:
            k.e(f"s_add_u32 s56, s{S_T0+m}, s63\nbuffer_load_dwordx4 v[{b}:{b+3}], v{AV}, s[{SWS}:{SWS+3}], s56 offen offset:{(i-7)*1024} {LDF}")
        vq.issue(("A",c))
    nxt=0
    while nxt<NR: ld(nxt); nxt+=1
    k.e(f"""
    v_and_b32 v{WA}, 15, v1
    v_lshrrev_b32 v{WA+1}, 4, v1
    v_and_b32 v{WA+2}, 2, v{WA+1}
    v_xor_b32 v{WA}, v{WA}, v{WA+2}
    v_lshlrev_b32 v{WA}, 4, v{WA}
    v_lshl_add_u32 v{WA}, v{WA+1}, 8, v{WA}
    s_lshl_b32 s56, s{S_W}, 14
    v_add_u32 v{WA}, s56, v{WA}
    v_xor_b32 v{WA+1}, 64, v{WA}
    v_xor_b32 v{WA+2}, 0x80, v{WA}
    v_xor_b32 v{WA+3}, 0xc0, v{WA}
    s_lshr_b32 s58, s{S_W}, 1
    s_and_b32 s59, s{S_W}, 1
    s_lshl_b32 s59, s59, 3
    v_lshrrev_b32 v{PV}, 3, v1
    v_add_u32 v{PV}, s59, v{PV}
    v_and_b32 v{PV+1}, 7, v1
    v_lshlrev_b32 v{PA}, 1, v{PV+1}
    v_xor_b32 v{PV}, v{PV}, v{PA}
    v_lshlrev_b32 v{PV+1}, 9, v{PV+1}
    v_lshl_add_u32 v{PV}, v{PV}, 4, v{PV+1}
    s_lshl_b32 s56, s58, 12
    v_add_u32 v{PV}, s56, v{PV}
    v_add_u32 v{PV+1}, 0x10000, v{PV}
    """)
    srd(k, SMIX, 30, 31, XB)
    def wr(m):
        for T in range(4): k.e(f"ds_write_b128 v{WA+T}, v[{ACC+m*16+T*4}:{ACC+m*16+T*4+3}] offset:{m*4096+T*1024}")
    for c,(m,i) in enumerate(seq):
        vwait(k, vq, lambda t: t==("A",c))
        b=RING[c%NR]
        for T in range(4):
            a=ACC+m*16+T*4; w=WF[i]+T*4
            cc="0" if i==0 else f"v[{a}:{a+3}]"
            k.e(f"v_mfma_f32_16x16x32_bf16 v[{a}:{a+3}], v[{w}:{w+3}], v[{b}:{b+3}], {cc}")
        if nxt<len(seq): ld(nxt); nxt+=1
        if c==nm*7-1: stamp(k,7)
        if i==8 and m>0: wr(m-1)
    O=WF[4]
    for c in range(8):
        k.e(f"v_lshlrev_b32 v{O+c}, 16, v{G4+c//2}" if c%2==0 else f"v_and_b32 v{O+c}, 0xffff0000, v{G4+c//2}")
    wr(nm-1)
    k.e("s_waitcnt lgkmcnt(0)\ns_barrier")
    stamp(k,8)
    rr=lambda sw: WF[sw//2]+(sw%2)*8
    for sw in range(8):
        if sw==7: k.e("s_waitcnt lgkmcnt(12)")
        for e in range(2): k.e(f"ds_read_b128 v[{rr(sw)+4*e}:{rr(sw)+4*e+3}], v{PV+(sw>>2)} offset:{(sw&3)*16384+e*256}")
    for sw in range(8):
        k.e(f"s_waitcnt lgkmcnt({14-2*sw})")
        for j in range(8): k.e(f"v_add_f32 v{O+j}, v{O+j}, v{rr(sw)+j}")
    P=O+8
    for j in range(4): k.e(f"v_cvt_pk_bf16_f32 v{P+j}, v{O+2*j}, v{O+2*j+1}")
    k.e(f"buffer_store_dwordx4 v[{P}:{P+3}], v{OA}, s[{SMIX}:{SMIX+3}], 0 offen")
    stamp(k,9); stamp_out(k)

def emit_kstep(k, M, R, now, prio_pos, prio_len, rd2=0):
    i=0; nM=len(M); nD=len(now); done=0; q=prio_len//4
    for mi,m in enumerate(M):
        pos=prio_pos+mi
        if PRIO and pos%q==0 and pos//q<4: k.e(f"s_setprio {3-pos//q}")
        k.e(m)
        for _ in range(2 if mi<rd2 else 1):
            if i<len(R):
                if i==13: k.e("s_waitcnt lgkmcnt(8)")
                k.e(R[i]); i+=1
        while now and done<(mi+1)*nD//nM: now.pop(0)(); done+=1
    assert i==len(R) and not now

WSLOT=16384; NWS=5; XBASE=NWS*WSLOT; XSLOT=22528; NXS=3
F_STAT=XBASE+NXS*XSLOT; F_DUMMY=F_STAT+3072
assert F_DUMMY+1024<=LDS_BYTES
ACC=16; AF=[112,136]; BF=[160,176]; Z=[192,208,224,240]
F_AREA={0:"s7",1:0,2:"s8",3:"s10",4:"s7",5:0,6:"s8",7:"s10",8:"s7"}
F_ZI=[Z[0],Z[1],112,128,144,160,176,Z[2],Z[3]]
def gen_F(k):
    k.e(f"""
    s_mul_i32 s60, s57, 37
    s_lshr_b32 s60, s60, 8
    s_mul_i32 s63, s60, 7
    s_sub_u32 s{S_CT}, s57, s63
    s_mul_i32 s{S_J}, s58, 3
    s_add_u32 s{S_J}, s{S_J}, s60
    s_mul_i32 s{S_CG}, s59, 7
    s_add_u32 s{S_CG}, s{S_CG}, s{S_CT}
    s_mul_i32 s{S_PJ}, s56, 3
    s_add_u32 s{S_PJ}, s{S_PJ}, s60
    s_mov_b32 s77, s60
    s_lshl_b32 s91, s57, 3
    s_add_u32 s91, s91, s{S_W}
    v_lshrrev_b32 v4, 4, v1
    s_lshl_b32 s60, s{S_W}, 2
    v_add_u32 v4, s60, v4
    v_and_b32 v5, 3, v4
    v_bfe_u32 v6, v4, 3, 1
    v_lshl_or_b32 v5, v6, 2, v5
    v_lshlrev_b32 v5, 1, v5
    v_and_b32 v6, 15, v1
    v_xor_b32 v5, v5, v6
    v_lshlrev_b32 v5, 4, v5
    v_mul_u32_u24 v2, 3584, v4
    v_add_u32 v2, v2, v5
    s_lshl_b32 s60, s{S_CG}, 8
    v_add_u32 v2, s60, v2
    v_lshrrev_b32 v6, 3, v1
    v_and_b32 v7, 7, v1
    v_lshrrev_b32 v8, 4, v1
    s_and_b32 s60, s{S_W}, 1
    s_lshl_b32 s60, s60, 2
    v_xor_b32 v7, v7, v8
    v_xor_b32 v7, s60, v7
    s_mul_i32 s62, s{S_J}, 174
    s_lshl_b32 s60, s{S_W}, 3
    s_add_u32 s60, s60, s62
    s_sub_u32 s60, s60, 1
    s_mul_i32 s60, s60, 896
    v_mul_u32_u24 v4, 896, v6
    v_lshl_add_u32 v4, v7, 4, v4
    v_add_u32 v4, s60, v4
    v_add_u32 v5, {63*896}, v4
    s_mov_b64 s[80:81], -1
    s_mov_b64 s[82:83], -1
    s_cmp_eq_u32 s{S_W}, 0
    s_cselect_b32 s80, 0xffffff00, s80
    s_cmp_eq_u32 s{S_W}, 4
    s_cselect_b32 s82, 0xffffff00, s82
    s_cmp_lt_u32 s{S_W}, 4
    s_cselect_b32 s63, 896, 0
    s_add_u32 s65, s{S_W1K}, {XBASE+16384}
    s_mov_b32 s64, {64*896}
    s_cmp_ge_u32 s{S_W}, 6
    s_cselect_b32 s64, 0x40000000, s64
    s_cselect_b32 s65, {F_DUMMY}, s65
    s_cselect_b32 s66, 0, {XSLOT}
    """)
    rot_setup(k, S_J, S_CG, ROT_F)
    k.e("s_waitcnt lgkmcnt(0)")
    srd(k, SX, 16, 17, XB); srd(k, SWA, 24, 25, 448*3584); srd(k, SWB, 26, 27, 448*3584)
    vq=Q(); nis={}
    def dW(vq, ks, mat):
        sl=(ks%NWS)*WSLOT+mat*8192
        if ROT_F:
            if mat==0 and ks%2==0: k.e(f"s_add_u32 s3, s3, 1\ns_cmp_eq_u32 s3, 7\ns_cselect_b32 s3, 0, s3\ns_mul_i32 s11, s3, {64*3584}\ns_lshl_b32 s{4+(ks//2)%3}, s3, 7")
            so=f"s_add_u32 s56, s11, {(ks&1)*32*3584}"
        else: so=f"s_mov_b32 s56, {ks*32*3584}"
        k.e(f"s_add_u32 m0, s{S_W1K}, {sl}\n{so}\nbuffer_load_dwordx4 v2, s[{(SWA,SWB)[mat]}:{(SWA,SWB)[mat]+3}], s56 offen lds"); vq.issue(("W",ks)); vq.nis[("W",ks)]=vq.nis.get(("W",ks),0)+1
    def dX(vq, p, t):
        sl=XBASE+(p%NXS)*XSLOT; po=f"s{4+p%3}" if ROT_F else str(p*128)
        if t==0:   k.e(f"s_add_u32 m0, s{S_W1K}, {sl}\ns_mov_b32 s56, {po}\ns_mov_b64 exec, s[80:81]\nbuffer_load_dwordx4 v4, s[{SX}:{SX+3}], s56 offen lds\ns_mov_b64 exec, -1")
        elif t==1: k.e(f"s_add_u32 m0, s{S_W1K}, {sl+8192}\ns_add_u32 s56, s63, {po}\ns_mov_b64 exec, s[82:83]\nbuffer_load_dwordx4 v5, s[{SX}:{SX+3}], s56 offen lds\ns_mov_b64 exec, -1")
        else:      k.e(f"s_mul_i32 s56, s66, {p%NXS}\ns_add_u32 m0, s65, s56\ns_add_u32 s56, s64, {po}\nbuffer_load_dwordx4 v5, s[{SX}:{SX+3}], s56 offen lds")
        vq.issue(("X",p)); vq.nis[("X",p)]=vq.nis.get(("X",p),0)+1
    gW=lambda ks: [("W",ks,0),("W",ks,1)]
    gX=lambda p: [("X",p,0),("X",p,1),("X",p,2)]
    run=lambda vq,d: (dW if d[0]=="W" else dX)(vq,d[1],d[2])
    vq.nis={}
    allp=[gW(0)+gX(0), gW(1), gW(2)+gX(1), gW(3), gW(4)+gX(2)]
    st_row_load(k, vq)
    for d in allp[0]: run(vq,d)
    pend0=[d for g in allp[F_PRO:] for d in g]
    srd(k, SWS, 34, 35, WS_BYTES); srd(k, SDBG, 32, 33, 256)
    lab=k.lab("nn")
    k.e(f"""
    s_or_b32 s56, s2, s{S_W}
    s_cmp_lg_u32 s56, 0
    s_cbranch_scc1 {lab}
    s_memrealtime s[58:59]
    s_waitcnt lgkmcnt(0)
    s_or_b32 s58, s58, 1
    v_mov_b32 v12, s58
    v_mov_b32 v13, s59
    v_mov_b32 v14, 0
    s_mov_b64 exec, 1
    buffer_store_dwordx2 v[12:13], v14, s[{SDBG}:{SDBG+3}], 0 offen sc0 sc1
    s_mov_b64 exec, -1
    {lab}:
    """)
    x_read_addr(k, 6, 7, 16)
    k.e(f"""
    s_lshr_b32 s56, s{S_W}, 2
    s_mul_i32 s56, s56, {6*2048}
    s_add_u32 s56, s56, {XBASE}
    v_add_u32 v6, s56, v6
    v_add_u32 v7, s56, v7
    v_lshrrev_b32 v18, 2, v16
    v_and_b32 v19, 3, v16
    v_and_b32 v20, 1, v17
    v_lshl_or_b32 v20, v20, 2, v18
    v_lshl_add_u32 v18, v17, 3, v18
    v_lshlrev_b32 v18, 8, v18
    v_lshl_add_u32 v18, v19, 3, v18
    s_and_b32 s56, s{S_W}, 3
    s_lshl_b32 s56, s56, 1
    v_xor_b32 v21, s56, v20
    v_xor_b32 v22, 1, v21
    v_lshl_add_u32 v8, v21, 5, v18
    v_lshl_add_u32 v9, v22, 5, v18
    v_add_u32 v10, 0xc000, v8
    v_add_u32 v11, 0xc000, v9
    v_lshrrev_b32 v16, 3, v1
    v_and_b32 v17, 1, v16
    v_lshrrev_b32 v16, 1, v16
    v_mul_u32_u24 v16, {XSLOT}, v16
    v_mul_u32_u24 v17, {96*128}, v17
    v_and_b32 v18, 7, v1
    v_lshlrev_b32 v18, 4, v18
    v_add3_u32 v16, v16, v17, v18
    v_add_u32 v16, {XBASE}, v16
    v_mov_b32 v20, 0x3f803f80
    v_mov_b32 v21, 0x3f803f80
    v_mov_b32 v22, 0x3f803f80
    v_mov_b32 v23, 0x3f803f80
    s_mov_b32 exec_hi, 0xffff
    ds_write_b128 v16, v[20:23]
    s_mov_b32 exec_hi, -1
    s_bitcmp1_b32 s{S_PJ}, 0
    s_cselect_b32 s92, 6, 0
    s_cselect_b32 s93, 3, 1
    s_cselect_b32 s94, 8, 2
    s_cselect_b32 s95, 5, 4
    s_lshr_b32 s{S_PJ}, s{S_PJ}, 1
    s_lshl_b32 s56, s{S_W}, 6
    v_add_u32 v{VGL}, s56, v1
    v_cmp_lt_u32 vcc, 95, v{VGL}
    v_cmp_ne_u32 s[58:59], 0, v{VGL}
    s_movk_i32 s56, 96
    v_cmp_ne_u32 s[60:61], s56, v{VGL}
    v_subbrev_co_u32 v{VGA}, vcc, 1, v{VGL}, vcc
    s_and_b64 s[58:59], s[58:59], s[60:61]
    v_cmp_gt_u32 vcc, 176, v{VGL}
    v_add_u32 v{VGA}, s62, v{VGA}
    s_and_b64 s[58:59], s[58:59], vcc
    s_movk_i32 s56, 2048
    v_cmp_gt_u32 s[60:61], s56, v{VGA}
    v_lshlrev_b32 v{VGA}, 4, v{VGA}
    v_add_u32 v{VGA}, {STATS_OFF}, v{VGA}
    s_and_b64 s[84:85], s[58:59], s[60:61]
    v_lshlrev_b32 v{VGL}, 4, v{VGL}
    v_add_u32 v{VGL}, {F_STAT}, v{VGL}
    v_lshlrev_b32 v16, 4, v1
    v_add_u32 v16, {F_DUMMY}, v16
    v_cndmask_b32 v{VGL}, v16, v{VGL}, vcc
    """)
    w2_setup(k, 16, 77)
    p2_addr(k, 4, 16)
    area_base(k, 7, 65536, 104448); area_base(k, 8, 32768, 120832); area_base(k, 10, 49152, 81920)
    for d in allp[1]: run(vq,d)
    touch1(k, vq)
    srd(k, SMIX, 28, 29, 1792*896)
    vwait(k, vq, lambda t: t==("ROW",))
    stats_compute(k, ZST, ZST+4)
    for g in allp[2:F_PRO]:
        for d in g: run(vq,d)
    vwait(k, vq, lambda t: t in (("W",0),("X",0)), "lgkmcnt(0)")
    k.e("s_barrier")
    stamp(k,1)
    def body(NM, hf):
        import copy
        vq_=Q(); vq_.q=list(vq.q); vq_.nis=dict(vq.nis); pend=list(pend0)
        return body2(NM,hf,vq_,pend)
    def body2(NM, hf, vq, pend):
        D_=lambda i: w2_dma(k,vq,i,F_AREA[i],SMIX,SWA)
        TR=lambda i: w2_tr(k,vq,i,F_AREA[i],TT,F_ZI[i])
        def reads(ks):
            L=[]; P=ks&1; slot=ks%NWS
            wb=(8,9) if slot<3 else (10,11); so=(slot if slot<3 else slot-3)*WSLOT; xs=(ks>>1)%NXS
            xr=lambda m: L.append(f"ds_read_b128 v[{AF[P]+m*4}:{AF[P]+m*4+3}], v{6+(ks&1)} offset:{xs*XSLOT+m*2048}")
            xr(0)
            for mat in range(2):
                for T in range(2):
                    b=BF[P]+(mat*2+T)*4
                    for h in range(2): L.append(f"ds_read_b64_tr_b16 v[{b+2*h}:{b+2*h+1}], v{wb[T]} offset:{so+mat*8192+h*1024}")
            for m in range(1,NM): xr(m)
            return L
        def mfmas(ks):
            P=ks&1; L=[]
            for m in range(NM):
                for n in range(4):
                    a=ACC+(m*4+n)*4; c="0" if ks==0 else f"v[{a}:{a+3}]"
                    L.append(f"v_mfma_f32_16x16x32_bf16 v[{a}:{a+3}], v[{BF[P]+n*4}:{BF[P]+n*4+3}], v[{AF[P]+m*4}:{AF[P]+m*4+3}], {c}")
            return L
        for r in reads(0): k.e(r)
        for ks in range(14):
            if ks<13: assert vq.nis.get(("W",ks+1))==2 and vq.nis.get(("X",(ks+1)>>1))==3, ks
            vwait(k, vq, lambda t: (t[0]=="W" and t[1]<=ks+1) or (t[0]=="X" and t[1]<=(ks+1)>>1), "lgkmcnt(0)")
            k.e("s_barrier")
            if KST: stamp(k,10+ks)
            if ks+5<14: pend+=gW(ks+5)
            if ks&1 and (ks>>1)+3<7: pend+=gX((ks>>1)+3)
            now=[(lambda d=d: run(vq,d)) for d in pend[:F_BUD]]; del pend[:F_BUD]
            if ks==0: now.append(lambda: st_nonce_load(k,vq))
            if ks==3: now.insert(0,lambda: st_publish(k,vq))
            if ks==T2KS:
                def t2():
                    k.e(f"""
                    v_lshlrev_b32 v{G4}, 7, v1
                    v_mov_b32 v{G4+1}, {OOB}
                    v_cmp_gt_u32 vcc, 11, v1
                    s_mul_i32 s56, s91, {75*128}
                    buffer_load_dword v{VDUM}, v{G4}, s[{SMIX}:{SMIX+3}], s56 offen
                    v_cndmask_b32 v{G4+2}, v{G4+1}, v{G4}, vcc
                    v_cmp_gt_u32 vcc, 19, v1
                    s_add_u32 s56, s56, 8192
                    buffer_load_dword v{VDUM}, v{G4+2}, s[{SMIX}:{SMIX+3}], s56 offen
                    v_cndmask_b32 v{G4+2}, v{G4+1}, v{G4}, vcc
                    s_mov_b32 s{SDBG}, s20
                    s_mov_b32 s{SDBG+1}, s21
                    s_mov_b32 s{SDBG+2}, {448*896}
                    s_mul_i32 s56, s91, {19*128}
                    buffer_load_dword v{VDUM}, v{G4+2}, s[{SDBG}:{SDBG+3}], s56 offen
                    """)
                    for _ in range(3): vq.issue(("T2",))
                now.append(t2)
            if ks==9: now.append(lambda: st_gran_load(k,vq))
            if ks==11:
                def gc():
                    st_gran_check(k, vq)
                    k.e(f"""
                    v_rcp_f32 v{G4+2}, v{G4+1}
                    v_mul_f32 v{G4+3}, v{G4+1}, v{G4+1}
                    v_sub_f32 v{G4}, 0, v{G4}
                    v_mul_f32 v{G4+1}, {hex(f2u(C0))}, v{G4+2}
                    v_mul_f32 v{VGA}, v{G4+2}, v{G4+2}
                    v_mul_f32 v{G4+2}, v{G4+2}, v{VGA}
                    v_mul_f32 v{G4+2}, {hex(f2u(C1))}, v{G4+2}
                    ds_write_b128 v{VGL}, v[{G4}:{G4+3}]
                    """)
                now.append(gc)
            if ks>=10: now=D_(ks-10)+now
            emit_kstep(k, mfmas(ks), reads(ks+1) if ks<13 else [], now, 0, NM*4)
        assert not pend
        stamp(k,2)
        CS=Z[2]
        k.e("s_setprio 0" if hf==0 else "s_setprio 1")
        srd(k, SWA, 20, 21, 448*896)
        k.e(f"""
        v_and_b32 v4, 15, v1
        v_lshlrev_b32 v4, 4, v4
        v_add_u32 v4, {F_STAT+hf*96*16}, v4
        ds_read_b128 v[{G4}:{G4+3}], v4
        v_lshlrev_b32 v5, 4, v1
        s_mul_i32 s62, s{S_J}, {11*A2_VT}
        s_lshl_b32 s63, s{S_CG}, 2
        s_and_b32 s56, s{S_W}, 3
        s_add_u32 s63, s63, s56
        s_lshl_b32 s63, s63, 10
        s_add_u32 s62, s62, s63
        s_add_u32 s62, s62, {hf*6*A2_VT}
        s_lshl_b32 s63, s{S_J}, 7
        s_lshl_b32 s56, s{S_CG}, 3
        s_add_u32 s63, s63, s56
        s_add_u32 s63, s63, {FLAG_OFF}
        """)
        for r in range(16): k.e(f"v_mov_b32_dpp v{CS+r}, v{ACC+r} row_newbcast:0 row_mask:0xf bank_mask:0xf")
        def tile(m, side):
            a=ACC+m*16; st=G4; T=[2,6,8,10]
            P=lambda x: f"v[{x}:{x+1}]"
            K0=176; S2=178
            L=["s_waitcnt lgkmcnt(0)", f"v_mov_b32 v{K0}, v{st+1}", f"v_mov_b32 v{S2}, v{st+3}"]
            for r in range(4): L.append(f"v_pk_fma_f32 {P(a+2*r)}, {P(st)}, {P(CS+2*r)}, {P(a+2*r)} op_sel_hi:[0,1,1]")
            for r in range(4): L.append(f"v_pk_mul_f32 {P(T[r])}, {P(a+2*r)}, {P(a+2*r)}")
            for r in range(4): L.append(f"v_pk_fma_f32 {P(T[r])}, {P(T[r])}, {P(st+2)}, {P(K0)} op_sel_hi:[1,0,0]")
            for r in range(4): L.append(f"v_pk_mul_f32 {P(T[r])}, {P(T[r])}, {P(a+2*r)}")
            for r in range(4): L+= [f"v_exp_f32 v{T[r]}, v{T[r]}", f"v_exp_f32 v{T[r]+1}, v{T[r]+1}", f"v_pk_fma_f32 {P(a+8+2*r)}, {P(st)}, {P(CS+8+2*r)}, {P(a+8+2*r)} op_sel_hi:[0,1,1]"]
            for r in range(4): L.append(f"v_pk_fma_f32 {P(T[r])}, {P(T[r])}, {P(S2)}, {P(S2)} op_sel_hi:[1,0,0]")
            for r in range(4): L+= [f"v_rcp_f32 v{T[r]}, v{T[r]}", f"v_rcp_f32 v{T[r]+1}, v{T[r]+1}", f"v_pk_mul_f32 {P(a+2*r)}, {P(a+2*r)}, {P(a+8+2*r)}"]
            for r in range(4): L.append(f"v_pk_mul_f32 {P(a+2*r)}, {P(a+2*r)}, {P(T[r])}")
            if m+1<NM: L.append(f"ds_read_b128 v[{G4}:{G4+3}], v4 offset:{(m+1)*256}")
            for r in range(4): L.append(f"v_cvt_pk_bf16_f32 v{a+8+r}, v{a+2*r}, v{a+2*r+1}")
            for c,l in enumerate(L):
                k.e(l)
                if side and c%10==5: side.pop(0)()
            while side: side.pop(0)()
            k.e(f"s_add_u32 s56, s62, {m*A2_VT}\nbuffer_store_dwordx4 v[{a+8}:{a+11}], v5, s[{SWS}:{SWS+3}], s56 offen {STF}"); vq.issue(("H",))
        tile(0,[]); TR(0)
        for m in range(1,5):
            tile(m, D_(m+3)); TR(m)
            if m==1: stamp(k,24)
            if m==3: stamp(k,25)
        if NM==6: tile(5, D_(8))
        else:
            k.e("s_waitcnt lgkmcnt(0)")
            for f in D_(8): f()
        stamp(k,3)
        return vq
    k.e(f"s_cmp_ge_u32 s{S_W}, 4\ns_cbranch_scc1 kF_h1")
    vq0=body(6,0)
    k.e("s_branch kF_join\nkF_h1:")
    vq1=body(5,1)
    k.e("kF_join:\ns_setprio 0")
    vb=Both(vq0,vq1)
    def fin():
        for i in range(5,9): w2_tr(k,vb,i,F_AREA[i],8,F_ZI[i])
    gen_P2(k, vb, 4, F_ZI, fin, 16, [80+4*i for i in range(8)], ("H",), 63)
    k.e("s_endpgm")

SLOT=49152; A_STAT=3*SLOT; AWOFF=26*1024
A_ACC=16; A_H=88; A_XF=96; A_WF=128; XO=192
def gen_A(k):
    vq=Q(); S_RG=S_J; S_HP=S_CG
    k.e(f"""
    kA:
    s_mul_i32 s60, s58, 11
    s_add_u32 s60, s60, s57
    s_sub_u32 s60, s60, 21
    s_lshr_b32 s{S_RG}, s60, 2
    s_and_b32 s60, s60, 3
    s_lshl_b32 s{S_HP}, s59, 2
    s_add_u32 s{S_HP}, s{S_HP}, s60
    s_mul_i32 s62, s{S_RG}, 192
    s_mul_i32 s60, s56, 11
    s_add_u32 s60, s60, s57
    s_sub_u32 s60, s60, 21
    s_mul_i32 s{S_PJ}, s60, 293
    s_lshr_b32 s{S_PJ}, s{S_PJ}, 11
    s_mul_i32 s63, s{S_PJ}, 7
    s_sub_u32 s{S_CT}, s60, s63
    v_lshrrev_b32 v10, 3, v1
    v_and_b32 v11, 7, v1
    v_lshrrev_b32 v12, 4, v1
    s_and_b32 s60, s{S_W}, 1
    s_lshl_b32 s60, s60, 2
    v_xor_b32 v13, v11, v12
    v_xor_b32 v13, s60, v13
    s_lshl_b32 s60, s{S_W}, 3
    s_add_u32 s60, s60, s62
    s_sub_u32 s60, s60, 16
    v_add_u32 v10, s60, v10
    s_movk_i32 s63, 896
    v_mul_lo_u32 v4, v10, s63
    v_lshl_add_u32 v4, v13, 4, v4
    v_add_u32 v5, {64*896}, v4
    v_mov_b32 v14, {OOB}
    v_cmp_gt_i32 vcc, 0, v10
    s_mov_b64 s[80:81], -1
    s_cmp_eq_u32 s{S_W}, 0
    s_cselect_b32 s80, 0xffffff00, s80
    v_cndmask_b32 v4, v4, v14, vcc
    s_mov_b32 s64, {(2**32+21)//22}
    s_mul_i32 s63, s{S_HP}, 112
    """)
    def wvoff(dst, uadd):
        k.e(f"""
        s_lshl_b32 s60, s{S_W}, 6
        s_add_i32 s60, s60, {uadd*64}
        v_add_u32 v10, s60, v1
        v_mul_hi_u32 v11, v10, s64
        v_mul_u32_u24 v12, 22, v11
        v_sub_u32 v12, v10, v12
        v_and_b32 v13, 0x33, v11
        v_bfe_u32 v14, v11, 2, 1
        v_lshl_or_b32 v13, v14, 3, v13
        v_bfe_u32 v14, v11, 3, 1
        v_lshl_or_b32 v13, v14, 2, v13
        v_mul_u32_u24 v13, 2688, v13
        v_mul_u32_u24 v14, 37, v12
        v_lshrrev_b32 v14, 8, v14
        v_mul_u32_u24 v15, {896-112}, v14
        v_lshl_add_u32 v15, v12, 4, v15
        v_add3_u32 v13, v13, v15, s63
        v_cmp_gt_u32 vcc, 21, v12
        v_mov_b32 v14, {OOB}
        s_nop 0
        v_cndmask_b32 v{dst}, v14, v13, vcc
        """)
    rot_setup(k, S_RG, S_HP, ROT_A)
    wvoff(6, -2)
    k.e("s_waitcnt lgkmcnt(0)")
    srd(k, SX, 16, 17, XB); srd(k, SWA, 18, 19, 448*2688)
    nis={}
    def dma(p, i):
        sl=(p%3)*SLOT+i*8192
        if i==0: k.e(f"s_add_u32 s3, s3, 1\ns_cmp_eq_u32 s3, 7\ns_cselect_b32 s3, 0, s3\ns_lshl_b32 s10, s3, 7\ns_mul_i32 s11, s3, {64*2688}")
        k.e(f"s_add_u32 m0, s{S_W1K}, {sl}")
        if i==0: k.e(f"s_mov_b64 exec, s[80:81]\nbuffer_load_dwordx4 v4, s[{SX}:{SX+3}], s10 offen lds\ns_mov_b64 exec, -1")
        elif i<3: k.e(f"s_add_u32 s56, s10, {(i-1)*64*896}\nbuffer_load_dwordx4 v5, s[{SX}:{SX+3}], s56 offen lds")
        elif i==3: k.e(f"s_mul_i32 s56, s65, s3\nbuffer_load_dwordx4 v6, s[{SMIX}:{SMIX+3}], s56 offen lds")
        else: k.e(f"s_nop 0\nbuffer_load_dwordx4 v{(2,3)[i-4]}, s[{SWA}:{SWA+3}], s11 offen lds")
        vq.issue(("S",p)); nis[p]=nis.get(p,0)+1
    stage=lambda p: [ (lambda i=i: dma(p,i)) for i in range(6)]
    pend=stage(0)+stage(1)+stage(2)
    st_row_load(k, vq)
    for _ in range(3): pend.pop(0)()
    k.e(f"""
    v_add_u32 v10, {128*896}, v5
    s_cmp_lt_u32 s{S_W}, 2
    s_cselect_b64 vcc, -1, 0
    v_cndmask_b32 v6, v6, v10, vcc
    s_movk_i32 s65, 128
    s_cselect_b32 s65, s65, {64*2688}
    s_cselect_b32 s{SMIX}, s16, s18
    s_cselect_b32 s{SMIX+1}, s17, s19
    s_cselect_b32 s{SMIX+2}, s{SX+2}, s{SWA+2}
    s_mov_b32 s{SMIX+3}, 0x20000
    """)
    pend.pop(0)()
    wvoff(2, 6); pend.pop(0)()
    wvoff(3, 14); pend.pop(0)()
    srd(k, SWS, 34, 35, WS_BYTES); srd(k, SDBG, 32, 33, 256); srd(k, SWB, 28, 29, 1792*896)
    k.e(f"s_lshr_b32 s66, s{S_W}, 1\ns_and_b32 s64, s{S_W}, 1\ns_mul_i32 s60, s66, {3*2048}")
    x_read_addr(k, 7, 8, 16)
    k.e(f"""
    v_add_u32 v{XO}, s60, v7
    v_add_u32 v{XO+1}, s60, v8
    v_lshrrev_b32 v18, 2, v16
    v_and_b32 v19, 3, v16
    v_lshrrev_b32 v20, 1, v17
    v_lshl_add_u32 v18, v20, 4, v18
    v_and_b32 v20, 1, v17
    v_lshl_add_u32 v18, v20, 2, v18
    v_mul_u32_u24 v18, 352, v18
    s_mul_i32 s60, s64, 56
    s_add_u32 s60, s60, {AWOFF}
    v_add_u32 v18, s60, v18
    v_lshl_add_u32 v9, v19, 3, v18
    v_min_u32 v19, 2, v19
    v_lshl_add_u32 v{XO+2}, v19, 3, v18
    v_add_u32 v{XO+2}, 32, v{XO+2}
    s_bitcmp1_b32 s66, 0
    s_cselect_b64 vcc, -1, 0
    v_cndmask_b32 v{XO+3}, v9, v{XO+2}, vcc
    v_add_u32 v{XO+4}, 224, v{XO+3}
    s_lshr_b32 s60, s66, 1
    s_mul_i32 s60, s60, 112
    v_add_u32 v{XO+3}, s60, v{XO+3}
    v_lshrrev_b32 v16, 3, v1
    v_mul_u32_u24 v16, {SLOT}, v16
    v_and_b32 v17, 7, v1
    v_lshl_add_u32 v16, v17, 4, v16
    v_mov_b32 v20, 0x3f803f80
    v_mov_b32 v21, 0x3f803f80
    v_mov_b32 v22, 0x3f803f80
    v_mov_b32 v23, 0x3f803f80
    s_mov_b64 exec, 0xffffff
    ds_write_b128 v16, v[20:23]
    s_mov_b64 exec, -1
    s_mov_b32 s92, 7
    s_mov_b32 s93, 9
    s_mov_b32 s94, 10
    s_mov_b32 s95, 10
    s_lshl_b32 s56, s{S_W}, 6
    v_add_u32 v{VGL}, s56, v1
    s_sub_u32 s56, s62, 16
    v_add_u32 v{VGA}, s56, v{VGL}
    v_cmp_gt_u32 vcc, 208, v{VGL}
    s_movk_i32 s56, 2048
    v_cmp_gt_u32 s[60:61], s56, v{VGA}
    v_lshlrev_b32 v{VGA}, 4, v{VGA}
    v_add_u32 v{VGA}, {STATS_OFF}, v{VGA}
    s_and_b64 s[84:85], vcc, s[60:61]
    v_lshlrev_b32 v{VGL}, 2, v{VGL}
    v_add_u32 v{VGL}, {A_STAT}, v{VGL}
    v_mov_b32 v16, {A_STAT+2048}
    v_cndmask_b32 v{VGL}, v16, v{VGL}, vcc
    s_mov_b32 s77, 1
    """)
    w2_setup(k, 16, 77)
    p2_addr(k, 3, 16)
    area_base(k, 7, 81920, 131072)
    AREA={0:49152,1:98304,2:"s7",3:49152,4:98304,5:"s7",6:49152,7:98304,8:"s7"}
    ZI=[208,224,160,176,192,96,128,144,240]
    D_=lambda i: w2_dma(k,vq,i,AREA[i],SWB,SWA)
    TR=lambda i,tmp=TT: w2_tr(k,vq,i,AREA[i],tmp,ZI[i])
    RADDR=[7,8,XO,XO+1,9,XO+2,XO+3,XO+4]
    cur={"slot":0}
    def setslot(s):
        d=(s-cur["slot"])*SLOT
        if d:
            for r in RADDR: k.e(f"v_add_u32 v{r}, {d&0xffffffff}, v{r}")
        cur["slot"]=s
    def reads(ks):
        P=ks&1; L=[]
        def tr(fr, areg, off):
            b=A_WF+P*32+fr*4
            for h in range(2): L.append(f"ds_read_b64_tr_b16 v[{b+2*h}:{b+2*h+1}], v{areg} offset:{(ks&1)*32*352+off+h*8*352}")
        xr=lambda fr,areg,off: L.append(f"ds_read_b128 v[{A_XF+P*16+fr*4}:{A_XF+P*16+fr*4+3}], v{areg} offset:{off}")
        xr(0, XO+(ks&1), 2048)
        for sec in range(3): tr(sec*2, 9, sec*112); tr(sec*2+1, XO+2, sec*112)
        xr(1, XO+(ks&1), 4096); xr(2, XO+(ks&1), 6144); xr(3, 7+(ks&1), 0)
        tr(6, XO+3, 0); tr(7, XO+4, 0)
        return L
    def mfmas(ks):
        P=ks&1; L=[]
        def mm(a, fr, xf, ct):
            w=A_WF+P*32+fr*4; x=A_XF+P*16+xf*4; cc="0" if ks==0 else f"v[{a}:{a+3}]"
            A,B=(w,x) if ct else (x,w)
            L.append(f"v_mfma_f32_16x16x32_bf16 v[{a}:{a+3}], v[{A}:{A+3}], v[{B}:{B+3}], {cc}")
        for m in range(3):
            for t in range(6): mm(A_ACC+(m*6+t)*4, t, m, t<4)
        mm(A_H, 6, 3, True); mm(A_H+4, 7, 3, False)
        return L
    if T1:
        k.e(f"s_mov_b64 s[4:5], s[{SMIX}:{SMIX+1}]\ns_mov_b32 s6, s{SMIX+2}")
        touch1(k, vq)
        k.e(f"s_mov_b64 s[{SMIX}:{SMIX+1}], s[4:5]\ns_mov_b32 s{SMIX+2}, s6")
    vwait(k, vq, lambda t: t==("ROW",))
    stats_compute(k, ZST, ZST+4)
    for _ in range(A_PRO-6): pend.pop(0)()
    vwait(k, vq, lambda t: t==("S",0), "lgkmcnt(0)")
    k.e("s_barrier")
    stamp(k,1)
    for i,s_ in enumerate(reads(0)):
        if i==14: k.e("s_waitcnt lgkmcnt(6)")
        k.e(s_)
    for ks in range(14):
        p=ks>>1
        if ks&1 and ks<13:
            assert nis.get(p+1,0)==6, (ks,nis)
            vwait(k, vq, lambda t: t[0]=="S" and t[1]<=p+1, "lgkmcnt(0)")
            k.e("s_barrier")
            setslot((p+1)%3)
            if p+3<7: pend+=stage(p+3)
        else: k.e("s_waitcnt lgkmcnt(0)")
        if KST: stamp(k,10+ks)
        now=pend[:A_BUD]; del pend[:A_BUD]
        if ks==0: now.append(lambda: st_nonce_load(k,vq))
        if ks==3: now.insert(0,lambda: st_publish(k,vq))
        if ks==9: now.append(lambda: st_gran_load(k,vq))
        if ks==11:
            def gc():
                st_gran_check(k, vq)
                k.e(f"""
                v_rcp_f32 v{G4+1}, v{G4+1}
                v_sub_f32 v{G4}, 0, v{G4}
                v_cndmask_b32 v{G4}, 0, v{G4}, s[84:85]
                v_cndmask_b32 v{G4+1}, 0, v{G4+1}, s[84:85]
                ds_write2st64_b32 v{VGL}, v{G4}, v{G4+1} offset0:0 offset1:4
                """)
            now.append(gc)
        if ks>=11: now=D_(ks-11)+now
        emit_kstep(k, mfmas(ks), reads(ks+1) if ks<13 else [], now, ((ks+1)&1)*20, 40, rd2=6)
    assert not pend
    stamp(k,2)
    k.e("s_setprio 0")
    srd(k, SWA, 20, 21, 448*896)
    side=[]; cnt={"c":0}
    def E(txt, every=8):
        for l in txt.split("\n"):
            if not l.strip(): continue
            k.e(l); cnt["c"]+=1
            if side and cnt["c"]%every==0 and not l.strip().startswith(("s_cmp","s_cselect","s_bitcmp")): side.pop(0)()
    E(f"""
    v_lshlrev_b32 v2, 4, v1
    s_mul_i32 s60, s64, 6144
    s_lshl_b32 s61, s66, 10
    s_add_u32 s61, s61, s60
    v_add_u32 v3, s61, v2
    s_and_b32 s61, s66, 1
    s_lshl_b32 s61, s61, 10
    s_add_u32 s61, s61, s60
    v_add_u32 v4, s61, v2
    s_lshl_b32 s61, s{S_W}, 12
    v_add_u32 v5, s61, v2
    {"s_nop 15" if env("DNOP",0) else ""}
    {"s_nop 15" if env("DNOP",0) else ""}
    {"s_nop 15" if env("DNOP",0) else ""}
    s_barrier
    ds_write_b128 v3, v[{A_H}:{A_H+3}]
    ds_write_b128 v4, v[{A_H+4}:{A_H+7}] offset:4096
    """)
    for t in range(4):
        a=A_ACC+(2*6+2+t)*4
        E(f"ds_write_b128 v5, v[{a}:{a+3}] offset:{12288+t*1024}")
    CSQ=96; CSK=104; CSV=[112,114]; NMU=[116,118,120,122]; RS=[124,126,192,194]; SEL=[113,115,117,119]; PK=128; PV=136; V0=144; V1=152; VS=88
    E(f"""
    v_lshrrev_b32 v3, 4, v1
    v_lshlrev_b32 v4, 8, v3
    v_add_u32 v4, s60, v4
    v_and_b32 v5, 15, v1
    v_lshlrev_b32 v6, 4, v5
    v_add_u32 v6, s60, v6
    s_add_u32 s61, s60, 2048
    s_lshl_b32 s63, s{S_W}, 12
    s_add_u32 s63, s63, {12288-8192}
    s_cmp_eq_u32 s66, 0
    s_cselect_b32 s61, s61, s63
    v_add_u32 v7, s61, v2
    s_mul_i32 s61, s66, {48*4}
    s_add_u32 s61, s61, {A_STAT}
    v_lshl_add_u32 v8, v5, 2, s61
    v_lshl_add_u32 v9, v3, 4, s61
    """)
    for i in range(4): E(f"ds_read_b32 v{NMU[i]}, v8 offset:{i*64}\nds_read_b32 v{RS[i]}, v8 offset:{1024+i*64}")
    E(f"""
    v_and_b32 v12, 1, v5
    v_cmp_eq_u32 s[86:87], 1, v12
    v_lshl_add_u32 v13, v3, 2, v12
    v_cmp_le_u32 s[88:89], v13, v5
    v_add_u32 v13, 2, v13
    v_cmp_le_u32 s[90:91], v13, v5
    v_cmp_eq_u32 s[82:83], 3, v3
    s_or_b32 s61, s{S_RG}, s66
    s_cmp_eq_u32 s61, 0
    s_cselect_b64 s[80:81], -1, 0
    v_mov_b32 v12, 0x0c0c0100
    v_mov_b32 v13, 0x01000c0c
    v_cndmask_b32 v12, v12, v13, s[86:87]
    v_mov_b32 v13, 0x0c0c0302
    v_mov_b32 v14, 0x03020c0c
    v_cndmask_b32 v13, v13, v14, s[86:87]
    v_mov_b32 v14, 0x0c0c0c0c
    v_cndmask_b32 v{SEL[0]}, v12, v14, s[88:89]
    v_cndmask_b32 v{SEL[1]}, v13, v14, s[90:91]
    v_cndmask_b32 v{SEL[2]}, v14, v12, s[88:89]
    v_cndmask_b32 v{SEL[3]}, v14, v13, s[90:91]
    s_waitcnt lgkmcnt(0)
    s_barrier
    ds_read_b128 v[{CSK}:{CSK+3}], v4 offset:2048
    ds_read_b128 v[{CSK+4}:{CSK+7}], v4 offset:3072
    ds_read_b128 v[{CSQ}:{CSQ+3}], v4
    ds_read_b128 v[{CSQ+4}:{CSQ+7}], v4 offset:1024
    ds_read_b128 v[{PK}:{PK+3}], v7
    ds_read_b128 v[{PK+4}:{PK+7}], v7 offset:1024
    ds_read_b32 v{CSV[0]}, v6 offset:4096
    ds_read_b32 v{CSV[1]}, v6 offset:5120
    ds_read_b128 v[{PV}:{PV+3}], v7 offset:2048
    ds_read_b128 v[{PV+4}:{PV+7}], v7 offset:3072
    ds_read_b128 v[{VS}:{VS+3}], v9
    ds_read_b128 v[{VS+4}:{VS+7}], v9 offset:1024
    """)
    P=lambda x: f"v[{x}:{x+1}]"
    def foldT(a, cs, i):
        s_=""
        for r in range(0,8,2): s_+=f"v_pk_fma_f32 {P(a+r)}, {P(NMU[i])}, {P(cs+r)}, {P(a+r)} op_sel_hi:[0,1,1]\n"
        for r in range(0,8,2): s_+=f"v_pk_mul_f32 {P(a+r)}, {P(RS[i])}, {P(a+r)} op_sel_hi:[0,1]\n"
        for r in range(4): s_+=f"v_cvt_pk_bf16_f32 v{a+r}, v{a+2*r}, v{a+2*r+1}\n"
        return s_
    def foldV(a, i):
        s_=""
        for t in range(2):
            for r in (0,2): s_+=f"v_pk_fma_f32 {P(a+4*t+r)}, {P(VS+r)}, {P(CSV[t])}, {P(a+4*t+r)} op_sel_hi:[1,0,1]\n"
        for t in range(2):
            for r in (0,2): s_+=f"v_pk_mul_f32 {P(a+4*t+r)}, {P(VS+4+r)}, {P(a+4*t+r)}\n"
        for t in range(2):
            d=(V0,V1)[t]+2*i
            s_+=f"v_cvt_pk_bf16_f32 v{d}, v{a+4*t}, v{a+4*t+1}\nv_cvt_pk_bf16_f32 v{d+1}, v{a+4*t+2}, v{a+4*t+3}\n"
        if i<3: s_+=f"ds_read_b128 v[{VS}:{VS+3}], v9 offset:{(i+1)*64}\nds_read_b128 v[{VS+4}:{VS+7}], v9 offset:{1024+(i+1)*64}\n"
        return s_
    am=lambda m: A_ACC+m*24
    KFr=lambda i: PK if i==0 else am(i-1)+8
    E("s_waitcnt lgkmcnt(8)")
    E(foldT(am(0)+8, CSK, 1)); E(foldT(am(0), CSQ, 1))
    E("s_waitcnt lgkmcnt(0)")
    TR(0)
    if TRW: k.e("s_waitcnt lgkmcnt(0)")
    E(foldT(PK, CSK, 0)); E(foldV(PV, 0))
    def smm(m):
        q=am(m)
        E(f"v_cndmask_b32 v{q+2}, v{q+2}, 0, s[82:83]\nv_cndmask_b32 v{q+3}, v{q+3}, 0, s[82:83]\ns_nop 1")
        k.e(f"v_mfma_f32_16x16x32_bf16 v[{q+4}:{q+7}], v[{KFr(m)}:{KFr(m)+3}], v[{q}:{q+3}], 0")
        k.e(f"v_mfma_f32_16x16x32_bf16 v[{q+12}:{q+15}], v[{KFr(m+1)}:{KFr(m+1)+3}], v[{q}:{q+3}], 0")
    smm(0)
    for m in (1,2):
        E(foldT(am(m)+8, CSK, m+1)); E(foldT(am(m), CSQ, m+1))
        smm(m)
        E("s_waitcnt lgkmcnt(0)")
        side.extend(D_(m+2)); TR(m)
        if TRW: k.e("s_waitcnt lgkmcnt(0)")
        E(foldV(am(m-1)+16, m))
    E("s_waitcnt lgkmcnt(0)")
    side.extend(D_(5))
    E(foldV(am(2)+16, 3))
    CSC=1.0/math.sqrt(28.0)*math.log2(math.e)
    E(f"""
    s_mul_i32 s61, s66, 48
    s_add_u32 s61, s61, s62
    v_add_u32 v2, s61, v5
    s_lshl_b32 s63, s{S_HP}, 1
    s_add_u32 s63, s63, s64
    s_add_u32 s63, s63, 56
    s_lshl_b32 s63, s63, 10
    s_mov_b32 s58, {(2**32+173)//174}
    s_mov_b32 s59, {hex(f2u(CSC))}
    s_movk_i32 s60, 2048
    v_mov_b32 v12, 0xff800000
    """)
    X=lambda m: am(m)+16
    all3=lambda fmt: E("\n".join(fmt(m) for m in range(3)))
    all3(lambda m: f"v_cndmask_b32 v{X(m)}, v{am(m)+4}, v{am(m)+5}, s[86:87]\nv_cndmask_b32 v{X(m)+1}, v{am(m)+6}, v{am(m)+7}, s[86:87]\nv_cndmask_b32 v{X(m)+2}, v{am(m)+12}, v{am(m)+13}, s[86:87]\nv_cndmask_b32 v{X(m)+3}, v{am(m)+14}, v{am(m)+15}, s[86:87]")
    E(f"v_cndmask_b32 v{X(0)}, v{X(0)}, v12, s[80:81]\nv_cndmask_b32 v{X(0)+1}, v{X(0)+1}, v12, s[80:81]")
    all3(lambda m: f"v_cndmask_b32 v{X(m)}, v{X(m)}, v{X(m)+2}, s[88:89]\nv_cndmask_b32 v{X(m)+1}, v{X(m)+1}, v{X(m)+3}, s[90:91]")
    all3(lambda m: f"v_max_f32 v{X(m)+2}, v{X(m)}, v{X(m)+1}")
    def xred(op):
        for sw in ("v_permlane16_swap_b32","v_permlane32_swap_b32"):
            all3(lambda m: f"v_mov_b32 v{X(m)+3}, v{X(m)+2}")
            E("s_nop 1")
            all3(lambda m: f"{sw} v{X(m)+2}, v{X(m)+3}")
            E("s_nop 0")
            all3(lambda m: f"{op} v{X(m)+2}, v{X(m)+2}, v{X(m)+3}")
    xred("v_max_f32")
    all3(lambda m: f"v_sub_f32 v{X(m)}, v{X(m)}, v{X(m)+2}\nv_sub_f32 v{X(m)+1}, v{X(m)+1}, v{X(m)+2}")
    all3(lambda m: f"v_mul_f32 v{X(m)}, s59, v{X(m)}\nv_mul_f32 v{X(m)+1}, s59, v{X(m)+1}")
    all3(lambda m: f"v_exp_f32 v{X(m)}, v{X(m)}\nv_exp_f32 v{X(m)+1}, v{X(m)+1}")
    E("s_nop 0")
    all3(lambda m: f"v_add_f32 v{X(m)+2}, v{X(m)}, v{X(m)+1}")
    xred("v_add_f32")
    all3(lambda m: f"v_rcp_f32 v{X(m)+2}, v{X(m)+2}")
    E("s_nop 0")
    all3(lambda m: f"v_mul_f32 v{X(m)}, v{X(m)}, v{X(m)+2}\nv_mul_f32 v{X(m)+1}, v{X(m)+1}, v{X(m)+2}")
    all3(lambda m: f"v_cvt_pk_bf16_f32 v{X(m)}, v{X(m)}, v{X(m)+1}")
    all3(lambda m: "\n".join(f"v_perm_b32 v{X(m)+4+i}, v{X(m)}, v{X(m)}, v{SEL[i]}" for i in range(4)))
    E("s_nop 1")
    for m in range(3):
        k.e(f"v_mfma_f32_16x16x32_bf16 v[{am(m)}:{am(m)+3}], v[{V0+2*m}:{V0+2*m+3}], v[{X(m)+4}:{X(m)+7}], 0")
        k.e(f"v_mfma_f32_16x16x32_bf16 v[{am(m)+4}:{am(m)+7}], v[{V1+2*m}:{V1+2*m+3}], v[{X(m)+4}:{X(m)+7}], 0")
    for m in range(3):
        E(f"""
        v_mul_hi_u32 v12, v2, s58
        v_mul_u32_u24 v13, 174, v12
        v_sub_u32 v13, v2, v13
        v_cmp_lt_u32 vcc, 94, v13
        v_mul_u32_u24 v12, 11, v12
        v_mov_b32 v14, {OOB}
        v_addc_co_u32 v13, vcc, 1, v13, vcc
        v_lshrrev_b32 v15, 4, v13
        v_add_u32 v12, v12, v15
        v_mul_u32_u24 v12, {A2_VT}, v12
        v_and_b32 v13, 15, v13
        v_cmp_gt_u32 vcc, s60, v2
        v_lshl_add_u32 v12, v13, 4, v12
        v_lshl_add_u32 v12, v3, 8, v12
        v_add_u32 v2, 16, v2
        v_cndmask_b32 v{4+m}, v14, v12, vcc
        """)
    while side: side.pop(0)()
    for m in range(3):
        a=am(m)
        for r in range(4): k.e(f"v_cvt_pk_bf16_f32 v{a+8+r}, v{a+2*r}, v{a+2*r+1}")
        k.e(f"buffer_store_dwordx4 v[{a+8}:{a+11}], v{4+m}, s[{SWS}:{SWS+3}], s63 offen {STF}"); vq.issue(("O",))
    stamp(k,3)
    k.e(f"s_lshl_b32 s63, s{S_RG}, 6\ns_lshl_b32 s56, s{S_HP}, 3\ns_add_u32 s63, s63, s56\ns_add_u32 s63, s63, {AFLAG_OFF}")
    k.e(f"s_cmp_lt_u32 s{S_PJ}, 12\ns_cbranch_scc1 kA_p2\ns_waitcnt vmcnt(0)\ns_barrier\ns_cmp_lg_u32 s{S_W}, 0\ns_cbranch_scc1 k_done")
    flag_store(k,63)
    k.e("s_endpgm\nkA_p2:")
    def fin():
        for i in range(3,6):
            TR(i); k.e("s_waitcnt lgkmcnt(0)")
            for f in D_(i+3): f()
        TR(6); TR(7); TR(8,8)
    gen_P2(k, vq, 3, ZI, fin, 16, [64+4*i for i in range(8)], ("O",), 63)

def gen_all():
    k=K("kk")
    k.e(f"""
    s_cmp_ge_u32 s2, 256
    s_cbranch_scc1 k_done
    s_load_dwordx16 s[16:31], s[0:1], 0
    s_load_dwordx4 s[32:35], s[0:1], 64
    v_lshrrev_b32 v2, 6, v0
    v_and_b32 v1, 63, v0
    s_and_b32 s56, s2, 7
    v_readfirstlane_b32 s{S_W}, v2
    s_lshr_b32 s57, s2, 3
    s_lshr_b32 s58, s56, 1
    s_and_b32 s59, s56, 1
    s_lshl_b32 s{S_W1K}, s{S_W}, 10
    s_lshl_b32 s61, s2, 3
    s_add_u32 s61, s61, s{S_W}
    s_mul_i32 s61, s61, 896
    v_lshlrev_b32 v{ZST+4}, 4, v1
    v_mov_b32 v{ZST}, 0
    v_mov_b32 v{ZST+1}, 0
    v_mov_b32 v{ZST+2}, 0
    v_mov_b32 v{ZST+3}, 0
    """)
    stamp(k,0)
    k.e("s_cmp_ge_u32 s57, 21\ns_cbranch_scc1 kA")
    gen_F(k)
    gen_A(k)
    k.e("k_done:")
    return kernel_text(KNAME, k.text(), 256, 102)

HEADER=open("parallel_sum__sliding_local_dilated__geglu_ffn__prompt.s.ref").read().split("; @launch")[0]
if __name__=="__main__":
    out=sys.argv[1]
    t,d=gen_all()
    txt=HEADER+f"; @launch grid=(256,1,1) block=(512,1,1) lds={LDS_BYTES}\n"+'.amdgcn_target "amdgcn-amd-amdhsa--gfx950"\n.text\n'+t+'.section .rodata,"a"\n.p2align 6\n'+d
    open(out,"w").write(txt)
    print(out, len(txt), txt.count("\n"))
```

```python
import sys, math, os, struct
from asmlib import *
def env(n,d): return type(d)(os.environ.get(n,d))
STAMPS=env("STAMPS",0); KST=env("KST",0); STW=env("STW",7)
ROT_A=env("ROT_A",1); ROT_F=env("ROT_F",0); ROT2=env("ROT2",1); PRIO=env("PRIO",1)
F_PRO=env("F_PRO",3); F_BUD=env("F_BUD",4); A_PRO=env("A_PRO",9); A_BUD=env("A_BUD",4)
TRW=env("TRW",1)
T1=env("T1",0)
T2KS=env("T2KS",-1)
LDF=os.environ.get("LDF","sc1"); STF=os.environ.get("STF","sc1")
KNAME="parallel_sum__sliding_local_dilated__geglu_ffn__prompt_kernel"

NKS=72; A2_VT=NKS*1024
STATS_OFF=10*1024*1024; FLAG_OFF=STATS_OFF+65536; AFLAG_OFF=FLAG_OFF+8192
STAMP_OFF=32*1024*1024; WS_BYTES=0x10000000; XB=2048*896
OOB=0x80000000; LDS_BYTES=153600
C0=-2.0*math.sqrt(2.0/math.pi)*math.log2(math.e); C1=C0*0.044715
def f2u(x): return struct.unpack("<I",struct.pack("<f",x))[0]
SPIN=1<<15

class Q:
    def __init__(s, mx=63): s.q=[]; s.mx=mx
    def issue(s, tag): s.q.append(tag)
    def need(s, pred):
        last=-1
        for i,t in enumerate(s.q):
            if pred(t): last=i
        if last<0: return None
        n=len(s.q)-1-last; s.q=s.q[last+1:]
        return min(n, s.mx)
class Both:
    def __init__(s,a,b): s.a=a; s.b=b
    def issue(s,t): s.a.issue(t); s.b.issue(t)
    def need(s,p):
        c=[v for v in (s.a.need(p), s.b.need(p)) if v is not None]
        if not c: return None
        n=min(c)
        s.a.q=s.a.q[max(0,len(s.a.q)-n):] if n else []
        s.b.q=s.b.q[max(0,len(s.b.q)-n):] if n else []
        return n
def vwait(k, vq, pred, extra=""):
    n=vq.need(pred)
    if n is not None: k.e(f"s_waitcnt vmcnt({n}) {extra}")
    elif extra: k.e(f"s_waitcnt {extra}")

S_W=12; S_W1K=13; S_J=14; S_CG=15
SX=36; SWA=40; SWB=44; SWS=48; SMIX=52; SDBG=96
S_NON=68; S_PJ=70; S_CT=71; S_T0=72; S_ROT=76
G4=12; TT=240; VH=244; VO=245; VT=246; VPA=247; VGA=248; VGL=249; VOA=250; VDUM=251; ZST=224
def srd(k, d, lo, hi, size):
    k.e(f"s_mov_b32 s{d}, s{lo}\ns_mov_b32 s{d+1}, s{hi}\ns_mov_b32 s{d+2}, {size}\ns_mov_b32 s{d+3}, 0x20000")
def stamp(k, i):
    if STAMPS: k.e(f"s_memrealtime s[100:101]\ns_waitcnt lgkmcnt(0)\nv_writelane_b32 v0, s100, {i}\ns_memtime s[100:101]\ns_waitcnt lgkmcnt(0)\nv_writelane_b32 v0, s100, {32+i}")
DBGW=env("DBGW",-1)
def stamp_out(k):
    if not STAMPS: return
    if DBGW>=0:
        lab=k.lab("do")
        k.e(f"s_cmp_lg_u32 s{S_W}, {STW}\ns_cbranch_scc1 {lab}\ns_mov_b32 s58, 8\ns_cmp_eq_u32 s2, {DBGW+168}\ns_cselect_b32 s58, 36, s58\ns_cselect_b32 s59, {DBGW}, s2\ns_cmp_lg_u32 s59, {DBGW}\ns_cbranch_scc1 {lab}")
        k.e("v_readlane_b32 s56, v0, 0")
        for n,i in enumerate([1,2,3,4,29,5,9]):
            k.e(f"v_readlane_b32 s57, v0, {i}\ns_nop 3\ns_sub_u32 s57, s57, s56\nv_writelane_b32 v3, s57, {n}")
        srd(k, SDBG, 32, 33, 256)
        k.e(f"v_lshlrev_b32 v2, 2, v1\ns_mov_b64 exec, 0x7f\nbuffer_store_dword v3, v2, s[{SDBG}:{SDBG+3}], s58 offen\n{lab}:")
        return
    lab=k.lab("so")
    k.e(f"s_cmp_lg_u32 s{S_W}, {STW}\ns_cbranch_scc1 {lab}\ns_lshl_b32 s56, s2, 8\ns_add_u32 s56, s56, {STAMP_OFF}\nv_lshlrev_b32 v2, 2, v1")
    k.e(f"buffer_store_dword v0, v2, s[{SWS}:{SWS+3}], s56 offen\n{lab}:")

def allsum(k, v, t):
    for mod in ["quad_perm:[1,0,3,2]","quad_perm:[2,3,0,1]","row_half_mirror","row_mirror"]:
        k.e(f"s_nop 1\nv_add_f32_dpp v{v}, v{v}, v{v} {mod} row_mask:0xf bank_mask:0xf")
    for sw in ["v_permlane16_swap_b32","v_permlane32_swap_b32"]:
        k.e(f"v_mov_b32 v{t}, v{v}\ns_nop 1\n{sw} v{v}, v{t}\ns_nop 1\nv_add_f32 v{v}, v{v}, v{t}")
def rbf16(k, v): k.e(f"v_cvt_pk_bf16_f32 v{v}, v{v}, v{v}\nv_lshlrev_b32 v{v}, 16, v{v}")
def stats_compute(k, d, t):
    u=t+2
    for i in range(4): k.e(f"v_lshlrev_b32 v{u+2*i}, 16, v{d+i}\nv_and_b32 v{u+2*i+1}, 0xffff0000, v{d+i}")
    k.e(f"v_add_f32 v{t}, v{u}, v{u+1}\nv_add_f32 v{t+1}, v{u+2}, v{u+3}\nv_add_f32 v{d}, v{u+4}, v{u+5}\nv_add_f32 v{d+1}, v{u+6}, v{u+7}\nv_add_f32 v{t}, v{t}, v{t+1}\nv_add_f32 v{d}, v{d}, v{d+1}\nv_add_f32 v{t}, v{t}, v{d}")
    allsum(k, t, u+8)
    k.e(f"v_mul_f32 v{t}, {hex(f2u(1.0/448))}, v{t}\nv_cmp_gt_u32 vcc, 56, v1")
    for i in range(8): k.e(f"v_sub_f32 v{u+i}, v{u+i}, v{t}")
    k.e(f"v_mul_f32 v{t+1}, v{u}, v{u}\nv_mul_f32 v{d}, v{u+1}, v{u+1}")
    for i in range(2,8,2): k.e(f"v_fmac_f32 v{t+1}, v{u+i}, v{u+i}\nv_fmac_f32 v{d}, v{u+i+1}, v{u+i+1}")
    k.e(f"v_add_f32 v{t+1}, v{t+1}, v{d}\nv_cndmask_b32 v{t+1}, 0, v{t+1}, vcc")
    allsum(k, t+1, u+8)
    k.e(f"v_mul_f32 v{t+1}, {hex(f2u(1.0/448))}, v{t+1}")
    rbf16(k, t); rbf16(k, t+1)
    k.e(f"v_add_f32 v{t+1}, {hex(f2u(1e-5))}, v{t+1}")
    rbf16(k, t+1)
    k.e(f"v_sqrt_f32 v{t+1}, v{t+1}\ns_nop 0")
    rbf16(k, t+1)

def st_row_load(k, vq):
    D=ZST
    k.e(f"s_mov_b32 exec_hi, 0x00ffffff\nbuffer_load_dwordx4 v[{D}:{D+3}], v{D+4}, s[{SX}:{SX+3}], s61 offen\ns_mov_b32 exec_hi, -1"); vq.issue(("ROW",))
def st_nonce_load(k, vq):
    k.e(f"v_mov_b32 v{G4+2}, 0\nbuffer_load_dwordx2 v[{G4}:{G4+1}], v{G4+2}, s[{SDBG}:{SDBG+3}], 0 offen sc0 sc1"); vq.issue(("NON",))
def st_publish(k, vq):
    D=ZST; a=k.lab("nok"); b=k.lab("nsp")
    vwait(k, vq, lambda t: t==("NON",))
    k.e(f"""
    v_readfirstlane_b32 s{S_NON}, v{G4}
    v_readfirstlane_b32 s{S_NON+1}, v{G4+1}
    s_cmp_lg_u32 s{S_NON}, 0
    s_cbranch_scc1 {a}
    s_mov_b32 s57, 0
    {b}:
    s_sleep 2
    buffer_load_dwordx2 v[{G4}:{G4+1}], v{G4+2}, s[{SDBG}:{SDBG+3}], 0 offen sc0 sc1
    s_add_u32 s57, s57, 1
    s_waitcnt vmcnt(0)
    v_readfirstlane_b32 s{S_NON}, v{G4}
    v_readfirstlane_b32 s{S_NON+1}, v{G4+1}
    s_cmp_lg_u32 s{S_NON}, 0
    s_cbranch_scc1 {a}
    s_cmp_lt_u32 s57, {SPIN}
    s_cbranch_scc1 {b}
    {a}:
    s_lshl_b32 s56, s2, 3
    s_add_u32 s56, s56, s{S_W}
    s_lshl_b32 s56, s56, 4
    s_add_u32 s56, s56, {STATS_OFF}
    v_mov_b32 v{D+6}, s{S_NON}
    v_mov_b32 v{D+7}, s{S_NON+1}
    s_mov_b64 exec, 1
    buffer_store_dwordx4 v[{D+4}:{D+7}], v{G4+2}, s[{SWS}:{SWS+3}], s56 offen sc0 sc1
    s_mov_b64 exec, -1
    """); vq.issue(("PUB",))
def st_gran_load(k, vq):
    k.e(f"buffer_load_dwordx4 v[{G4}:{G4+3}], v{VGA}, s[{SWS}:{SWS+3}], 0 offen sc0 sc1"); vq.issue(("GR",))
def st_gran_check(k, vq):
    a=k.lab("gok"); b=k.lab("gsp")
    vwait(k, vq, lambda t: t==("GR",))
    k.e(f"""
    v_cmp_ne_u64 vcc, s[{S_NON}:{S_NON+1}], v[{G4+2}:{G4+3}]
    s_and_b64 vcc, vcc, s[84:85]
    s_cbranch_scc0 {a}
    s_mov_b32 s57, 0
    {b}:
    s_sleep 2
    buffer_load_dwordx4 v[{G4}:{G4+3}], v{VGA}, s[{SWS}:{SWS+3}], 0 offen sc0 sc1
    s_add_u32 s57, s57, 1
    s_waitcnt vmcnt(0)
    v_cmp_ne_u64 vcc, s[{S_NON}:{S_NON+1}], v[{G4+2}:{G4+3}]
    s_and_b64 vcc, vcc, s[84:85]
    s_cbranch_scc0 {a}
    s_cmp_lt_u32 s57, {SPIN}
    s_cbranch_scc1 {b}
    {a}:
    """)

def rot_setup(k, a, b, on):
    if not on: k.e("s_mov_b32 s3, -1"); return
    k.e(f"""
    s_add_u32 s3, s{a}, s{b}
    s_mul_i32 s10, s3, 86
    s_lshr_b32 s10, s10, 8
    s_mul_i32 s10, s10, 3
    s_sub_u32 s3, s3, s10
    s_lshl_b32 s10, s3, 1
    s_cmp_eq_u32 s3, 2
    s_cselect_b32 s3, 5, s10
    s_sub_u32 s3, s3, 1
    """)
def x_read_addr(k, d0, d1, t):
    k.e(f"""
    v_and_b32 v{t}, 15, v1
    v_lshrrev_b32 v{t+1}, 4, v1
    v_lshrrev_b32 v{t+2}, 1, v{t}
    v_xor_b32 v{t+3}, v{t+1}, v{t+2}
    v_xor_b32 v{t+4}, 4, v{t+3}
    v_lshlrev_b32 v{t+2}, 7, v{t}
    v_lshl_add_u32 v{d0}, v{t+3}, 4, v{t+2}
    v_lshl_add_u32 v{d1}, v{t+4}, 4, v{t+2}
    """)

def touch1(k, vq):
    if not T1: return
    tab=[(28,49,1792*896),(20,13,448*896)]
    if T1>=2: tab+=[(24,49,448*3584),(26,49,448*3584),(18,37,448*2688),(16,56,XB)]
    lab=k.lab("t1")
    k.e(f"s_mov_b32 s58, 0\ns_mov_b32 s{SMIX+3}, 0x20000\ns_mov_b32 s{SMIX}, s28\ns_mov_b32 s{SMIX+1}, s29\ns_mov_b32 s{SMIX+2}, 0")
    for w,(p,n,sz) in enumerate(tab):
        k.e(f"s_cmp_eq_u32 s{S_W}, {7-w}\ns_cselect_b32 s{SMIX}, s{p}, s{SMIX}\ns_cselect_b32 s{SMIX+1}, s{p+1}, s{SMIX+1}\ns_cselect_b32 s{SMIX+2}, {sz}, s{SMIX+2}\ns_cselect_b32 s58, {n}, s58")
    k.e(f"""
    s_mul_i32 s59, s58, s2
    s_lshl_b32 s59, s59, 7
    v_cmp_gt_u32 vcc, s58, v1
    v_lshlrev_b32 v{VDUM}, 7, v1
    v_mov_b32 v16, {OOB}
    v_cndmask_b32 v16, v16, v{VDUM}, vcc
    buffer_load_dword v{VDUM}, v16, s[{SMIX}:{SMIX+3}], s59 offen
    """); vq.issue(("T1",))

def w2_setup(k, t, cls):
    k.e(f"""
    v_lshrrev_b32 v{t}, 3, v1
    v_and_b32 v{t+1}, 7, v1
    v_lshrrev_b32 v{t+2}, 4, v1
    v_lshlrev_b32 v{t+3}, 1, v{t+2}
    v_xor_b32 v{t+1}, v{t+1}, v{t+3}
    v_mul_u32_u24 v{VH}, 896, v{t}
    v_lshl_add_u32 v{VH}, v{t+1}, 4, v{VH}
    s_lshl_b32 s56, s{S_CT}, 7
    v_add_u32 v{VH}, s56, v{VH}
    v_mov_b32 v{t+1}, {OOB}
    v_cmp_gt_u32 vcc, 4, v{t}
    s_mul_i32 s78, s{S_W}, {7*32*896}
    s_mul_i32 s79, s{S_W}, {2*28*896}
    v_cndmask_b32 v{VO}, v{t+1}, v{VH}, vcc
    v_bfe_u32 v{t}, v1, 2, 2
    v_lshl_add_u32 v{t}, v{t+2}, 2, v{t}
    v_bfe_u32 v{t+1}, v{t}, 1, 2
    v_lshlrev_b32 v{t}, 7, v{t}
    v_and_b32 v{t+2}, 3, v1
    v_lshl_add_u32 v{t}, v{t+2}, 3, v{t}
    v_lshl_add_u32 v{VT}, v{t+1}, 5, v{t}
    s_lshl_b32 s56, s{S_W}, 12
    v_add_u32 v{VT}, s56, v{VT}
    """)
    if ROT2: k.e(f"s_lshl_b32 s{S_ROT}, s{cls}, 1\ns_add_u32 s{S_ROT}, s{S_ROT}, s{S_CT}\ns_sub_u32 s56, s{S_ROT}, 7\ns_cmp_ge_u32 s{S_ROT}, 7\ns_cselect_b32 s{S_ROT}, s56, s{S_ROT}")
    else: k.e(f"s_mov_b32 s{S_ROT}, 0")
    k.e(f"s_sub_u32 s77, s{S_ROT}, 1")
def area_base(k, sd, lo, hi):
    k.e(f"s_mov_b32 s{sd}, {lo}\ns_cmp_ge_u32 s{S_W}, 4\ns_cselect_b32 s{sd}, {hi-16384}, s{sd}")
def w2_dma(k, vq, i, base, sd, so):
    def one(q):
        pre=""
        if q==0:
            if i<7: pre=f"s_add_u32 s77, s77, 1\ns_cmp_eq_u32 s77, 7\ns_cselect_b32 s77, 0, s77\ns_mul_i32 s67, s77, {32*896}\ns_add_u32 s67, s67, s78\n"
            else:   pre=f"s_add_u32 s67, s79, {28*(i-7)*896}\n"
            pre+=f"s_lshl_b32 s9, s{S_W}, 12\ns_add_u32 s9, s9, {base}\n"
        v=VO if (i>=7 and q==3) else VH; srdn=sd if i<7 else so
        k.e(f"{pre}s_add_u32 m0, s9, {q*1024}\ns_add_u32 s56, s67, {q*8*896}\nbuffer_load_dwordx4 v{v}, s[{srdn}:{srdn+3}], s56 offen lds")
        vq.issue(("W2",i))
    return [ (lambda q=q: one(q)) for q in range(4)]
def w2_tr(k, vq, i, base, tmp, Z):
    vwait(k, vq, lambda t: t==("W2",i), "lgkmcnt(7)")
    k.e(f"v_add_u32 v{tmp}, {base}, v{VT}")
    for T in range(1,4): k.e(f"v_xor_b32 v{tmp+T}, {T*32}, v{tmp}")
    for T in range(4):
        for h in range(2): k.e(f"ds_read_b64_tr_b16 v[{Z+4*T+2*h}:{Z+4*T+2*h+1}], v{tmp+T} offset:{h*2048}")

def p2_addr(k, nm, t):
    k.e(f"s_mul_i32 s56, s{S_PJ}, 11")
    for i in range(4): k.e(f"s_add_u32 s{S_T0+i}, s56, s{92+i}\ns_mul_i32 s{S_T0+i}, s{S_T0+i}, {A2_VT}")
    k.e(f"""
    v_and_b32 v{t}, 15, v1
    v_min_u32 v{VPA}, 13, v{t}
    v_lshlrev_b32 v{VPA}, 3, v{VPA}
    s_lshl_b32 s56, s{S_PJ}, 7
    s_add_u32 s56, s56, {FLAG_OFF}
    v_add_u32 v{VPA}, s56, v{VPA}
    s_mul_i32 s56, s{S_PJ}, 174
    s_mul_i32 s57, s56, 342
    s_lshr_b32 s57, s57, 16
    s_add_u32 s58, s56, 173
    s_min_u32 s58, s58, 2047
    s_mul_i32 s58, s58, 342
    s_lshr_b32 s58, s58, 16
    s_cmp_lg_u32 s58, s57
    s_cselect_b32 s58, 15, 7
    v_min_u32 v{t}, s58, v{t}
    s_lshl_b32 s58, s57, 6
    s_add_u32 s58, s58, {AFLAG_OFF}
    v_lshl_add_u32 v{t}, v{t}, 3, s58
    v_cmp_lt_u32 vcc, 15, v1
    s_lshr_b32 s58, s{S_W}, 1
    s_and_b32 s59, s{S_W}, 1
    v_cndmask_b32 v{VPA}, v{VPA}, v{t}, vcc
    s_lshl_b32 s59, s59, 3
    s_cmp_eq_u32 s58, 1
    s_cselect_b32 s60, s93, s92
    s_cmp_eq_u32 s58, 2
    s_cselect_b32 s60, s94, s60
    s_cmp_eq_u32 s58, 3
    s_cselect_b32 s60, s95, s60
    s_lshl_b32 s60, s60, 4
    s_add_u32 s60, s60, s59
    v_lshrrev_b32 v{VOA}, 3, v1
    v_add_u32 v{VOA}, s60, v{VOA}
    v_cmp_lt_u32 vcc, 95, v{VOA}
    v_cmp_ne_u32 s[60:61], 0, v{VOA}
    s_movk_i32 s59, 96
    v_cmp_ne_u32 s[86:87], s59, v{VOA}
    v_subbrev_co_u32 v{VOA}, vcc, 1, v{VOA}, vcc
    s_and_b64 s[60:61], s[60:61], s[86:87]
    v_add_u32 v{VOA}, s56, v{VOA}
    s_cmp_lt_u32 s58, {nm}
    s_cselect_b64 s[86:87], -1, 0
    s_and_b64 s[60:61], s[60:61], s[86:87]
    v_mul_u32_u24 v{VOA}, 896, v{VOA}
    v_and_b32 v{t}, 7, v1
    v_lshl_add_u32 v{VOA}, v{t}, 4, v{VOA}
    s_lshl_b32 s56, s{S_CT}, 7
    v_add_u32 v{VOA}, s56, v{VOA}
    v_mov_b32 v{t}, {OOB}
    v_cndmask_b32 v{VOA}, v{t}, v{VOA}, s[60:61]
    """)

def flag_store(k, soff):
    k.e(f"""
    v_mov_b32 v2, s{S_NON}
    v_mov_b32 v3, s{S_NON+1}
    v_mov_b32 v4, 0
    s_mov_b64 exec, 1
    buffer_store_dwordx2 v[2:3], v4, s[{SWS}:{SWS+3}], s{soff} offen sc0 sc1
    s_mov_b64 exec, -1
    """)

def gen_P2(k, vq, nm, WF, fin, ACC, RING, otag, soff):
    PV=2; AV=5; OA=6; PA=7; WA=8
    vwait(k, vq, lambda t: t==otag)
    k.e("s_barrier")
    stamp(k,4)
    l1=k.lab("w0")
    k.e(f"v_mov_b32 v{OA}, v{VOA}\nv_mov_b32 v{PA}, v{VPA}\ns_cmp_lg_u32 s{S_W}, 0\ns_cbranch_scc1 {l1}")
    flag_store(k, soff)
    k.e(f"{l1}:")
    k.e(f"buffer_load_dwordx4 v[{G4}:{G4+3}], v{OA}, s[{SX}:{SX+3}], 0 offen"); vq.issue(("XR",))
    fin()
    stamp(k,29)
    a=k.lab("pok"); b=k.lab("psp")
    k.e(f"""
    s_cmp_lg_u32 s{S_W}, 0
    s_cbranch_scc1 {a}
    s_mov_b32 s57, 0
    s_mov_b32 exec_hi, 0
    {b}:
    buffer_load_dwordx2 v[{PV}:{PV+1}], v{PA}, s[{SWS}:{SWS+3}], 0 offen sc0 sc1
    s_add_u32 s57, s57, 1
    s_waitcnt vmcnt(0)
    v_cmp_ne_u64 vcc, s[{S_NON}:{S_NON+1}], v[{PV}:{PV+1}]
    s_cmp_eq_u64 vcc, 0
    s_cbranch_scc1 {a}
    s_sleep 4
    s_cmp_lt_u32 s57, {SPIN}
    s_cbranch_scc1 {b}
    {a}:
    s_mov_b32 exec_hi, -1
    v_lshlrev_b32 v{AV}, 4, v1
    s_mul_i32 s64, s{S_W}, 7168
    s_add_u32 s66, s64, 7168
    s_lshl_b32 s65, s{S_ROT}, 10
    s_add_u32 s65, s65, s64
    s_sub_u32 s65, s65, 1024
    s_lshl_b32 s63, s{S_W}, 11
    s_add_u32 s63, s63, {56*1024}
    s_waitcnt lgkmcnt(0)
    s_barrier
    """)
    stamp(k,5)
    seq=[(m,i) for i in range(7) for m in range(nm)]+[(m,i) for m in range(nm) for i in (7,8)]
    NR=len(RING)
    def ld(c):
        m,i=seq[c]; b=RING[c%NR]
        if i<7:
            if m==0: k.e("s_add_u32 s65, s65, 1024\ns_cmp_eq_u32 s65, s66\ns_cselect_b32 s65, s64, s65")
            k.e(f"s_add_u32 s56, s{S_T0+m}, s65\nbuffer_load_dwordx4 v[{b}:{b+3}], v{AV}, s[{SWS}:{SWS+3}], s56 offen {LDF}")
        else:
            k.e(f"s_add_u32 s56, s{S_T0+m}, s63\nbuffer_load_dwordx4 v[{b}:{b+3}], v{AV}, s[{SWS}:{SWS+3}], s56 offen offset:{(i-7)*1024} {LDF}")
        vq.issue(("A",c))
    nxt=0
    while nxt<NR: ld(nxt); nxt+=1
    k.e(f"""
    v_and_b32 v{WA}, 15, v1
    v_lshrrev_b32 v{WA+1}, 4, v1
    v_and_b32 v{WA+2}, 2, v{WA+1}
    v_xor_b32 v{WA}, v{WA}, v{WA+2}
    v_lshlrev_b32 v{WA}, 4, v{WA}
    v_lshl_add_u32 v{WA}, v{WA+1}, 8, v{WA}
    s_lshl_b32 s56, s{S_W}, 14
    v_add_u32 v{WA}, s56, v{WA}
    v_xor_b32 v{WA+1}, 64, v{WA}
    v_xor_b32 v{WA+2}, 0x80, v{WA}
    v_xor_b32 v{WA+3}, 0xc0, v{WA}
    s_lshr_b32 s58, s{S_W}, 1
    s_and_b32 s59, s{S_W}, 1
    s_lshl_b32 s59, s59, 3
    v_lshrrev_b32 v{PV}, 3, v1
    v_add_u32 v{PV}, s59, v{PV}
    v_and_b32 v{PV+1}, 7, v1
    v_lshlrev_b32 v{PA}, 1, v{PV+1}
    v_xor_b32 v{PV}, v{PV}, v{PA}
    v_lshlrev_b32 v{PV+1}, 9, v{PV+1}
    v_lshl_add_u32 v{PV}, v{PV}, 4, v{PV+1}
    s_lshl_b32 s56, s58, 12
    v_add_u32 v{PV}, s56, v{PV}
    v_add_u32 v{PV+1}, 0x10000, v{PV}
    """)
    srd(k, SMIX, 30, 31, XB)
    def wr(m):
        for T in range(4): k.e(f"ds_write_b128 v{WA+T}, v[{ACC+m*16+T*4}:{ACC+m*16+T*4+3}] offset:{m*4096+T*1024}")
    for c,(m,i) in enumerate(seq):
        vwait(k, vq, lambda t: t==("A",c))
        b=RING[c%NR]
        for T in range(4):
            a=ACC+m*16+T*4; w=WF[i]+T*4
            cc="0" if i==0 else f"v[{a}:{a+3}]"
            k.e(f"v_mfma_f32_16x16x32_bf16 v[{a}:{a+3}], v[{w}:{w+3}], v[{b}:{b+3}], {cc}")
        if nxt<len(seq): ld(nxt); nxt+=1
        if c==nm*7-1: stamp(k,7)
        if i==8 and m>0: wr(m-1)
    O=WF[4]
    for c in range(8):
        k.e(f"v_lshlrev_b32 v{O+c}, 16, v{G4+c//2}" if c%2==0 else f"v_and_b32 v{O+c}, 0xffff0000, v{G4+c//2}")
    wr(nm-1)
    k.e("s_waitcnt lgkmcnt(0)\ns_barrier")
    stamp(k,8)
    rr=lambda sw: WF[sw//2]+(sw%2)*8
    for sw in range(8):
        if sw==7: k.e("s_waitcnt lgkmcnt(12)")
        for e in range(2): k.e(f"ds_read_b128 v[{rr(sw)+4*e}:{rr(sw)+4*e+3}], v{PV+(sw>>2)} offset:{(sw&3)*16384+e*256}")
    for sw in range(8):
        k.e(f"s_waitcnt lgkmcnt({14-2*sw})")
        for j in range(8): k.e(f"v_add_f32 v{O+j}, v{O+j}, v{rr(sw)+j}")
    P=O+8
    for j in range(4): k.e(f"v_cvt_pk_bf16_f32 v{P+j}, v{O+2*j}, v{O+2*j+1}")
    k.e(f"buffer_store_dwordx4 v[{P}:{P+3}], v{OA}, s[{SMIX}:{SMIX+3}], 0 offen")
    stamp(k,9); stamp_out(k)

def emit_kstep(k, M, R, now, prio_pos, prio_len, rd2=0):
    i=0; nM=len(M); nD=len(now); done=0; q=prio_len//4
    for mi,m in enumerate(M):
        pos=prio_pos+mi
        if PRIO and pos%q==0 and pos//q<4: k.e(f"s_setprio {3-pos//q}")
        k.e(m)
        for _ in range(2 if mi<rd2 else 1):
            if i<len(R):
                if i==13: k.e("s_waitcnt lgkmcnt(8)")
                k.e(R[i]); i+=1
        while now and done<(mi+1)*nD//nM: now.pop(0)(); done+=1
    assert i==len(R) and not now

WSLOT=16384; NWS=5; XBASE=NWS*WSLOT; XSLOT=22528; NXS=3
F_STAT=XBASE+NXS*XSLOT; F_DUMMY=F_STAT+3072
assert F_DUMMY+1024<=LDS_BYTES
ACC=16; AF=[112,136]; BF=[160,176]; Z=[192,208,224,240]
F_AREA={0:"s7",1:0,2:"s8",3:"s10",4:"s7",5:0,6:"s8",7:"s10",8:"s7"}
F_ZI=[Z[0],Z[1],112,128,144,160,176,Z[2],Z[3]]
def gen_F(k):
    k.e(f"""
    s_mul_i32 s60, s57, 37
    s_lshr_b32 s60, s60, 8
    s_mul_i32 s63, s60, 7
    s_sub_u32 s{S_CT}, s57, s63
    s_mul_i32 s{S_J}, s58, 3
    s_add_u32 s{S_J}, s{S_J}, s60
    s_mul_i32 s{S_CG}, s59, 7
    s_add_u32 s{S_CG}, s{S_CG}, s{S_CT}
    s_mul_i32 s{S_PJ}, s56, 3
    s_add_u32 s{S_PJ}, s{S_PJ}, s60
    s_mov_b32 s77, s60
    s_lshl_b32 s91, s57, 3
    s_add_u32 s91, s91, s{S_W}
    v_lshrrev_b32 v4, 4, v1
    s_lshl_b32 s60, s{S_W}, 2
    v_add_u32 v4, s60, v4
    v_and_b32 v5, 3, v4
    v_bfe_u32 v6, v4, 3, 1
    v_lshl_or_b32 v5, v6, 2, v5
    v_lshlrev_b32 v5, 1, v5
    v_and_b32 v6, 15, v1
    v_xor_b32 v5, v5, v6
    v_lshlrev_b32 v5, 4, v5
    v_mul_u32_u24 v2, 3584, v4
    v_add_u32 v2, v2, v5
    s_lshl_b32 s60, s{S_CG}, 8
    v_add_u32 v2, s60, v2
    v_lshrrev_b32 v6, 3, v1
    v_and_b32 v7, 7, v1
    v_lshrrev_b32 v8, 4, v1
    s_and_b32 s60, s{S_W}, 1
    s_lshl_b32 s60, s60, 2
    v_xor_b32 v7, v7, v8
    v_xor_b32 v7, s60, v7
    s_mul_i32 s62, s{S_J}, 174
    s_lshl_b32 s60, s{S_W}, 3
    s_add_u32 s60, s60, s62
    s_sub_u32 s60, s60, 1
    s_mul_i32 s60, s60, 896
    v_mul_u32_u24 v4, 896, v6
    v_lshl_add_u32 v4, v7, 4, v4
    v_add_u32 v4, s60, v4
    v_add_u32 v5, {63*896}, v4
    s_mov_b64 s[80:81], -1
    s_mov_b64 s[82:83], -1
    s_cmp_eq_u32 s{S_W}, 0
    s_cselect_b32 s80, 0xffffff00, s80
    s_cmp_eq_u32 s{S_W}, 4
    s_cselect_b32 s82, 0xffffff00, s82
    s_cmp_lt_u32 s{S_W}, 4
    s_cselect_b32 s63, 896, 0
    s_add_u32 s65, s{S_W1K}, {XBASE+16384}
    s_mov_b32 s64, {64*896}
    s_cmp_ge_u32 s{S_W}, 6
    s_cselect_b32 s64, 0x40000000, s64
    s_cselect_b32 s65, {F_DUMMY}, s65
    s_cselect_b32 s66, 0, {XSLOT}
    """)
    rot_setup(k, S_J, S_CG, ROT_F)
    k.e("s_waitcnt lgkmcnt(0)")
    srd(k, SX, 16, 17, XB); srd(k, SWA, 24, 25, 448*3584); srd(k, SWB, 26, 27, 448*3584)
    vq=Q(); nis={}
    def dW(vq, ks, mat):
        sl=(ks%NWS)*WSLOT+mat*8192
        if ROT_F:
            if mat==0 and ks%2==0: k.e(f"s_add_u32 s3, s3, 1\ns_cmp_eq_u32 s3, 7\ns_cselect_b32 s3, 0, s3\ns_mul_i32 s11, s3, {64*3584}\ns_lshl_b32 s{4+(ks//2)%3}, s3, 7")
            so=f"s_add_u32 s56, s11, {(ks&1)*32*3584}"
        else: so=f"s_mov_b32 s56, {ks*32*3584}"
        k.e(f"s_add_u32 m0, s{S_W1K}, {sl}\n{so}\nbuffer_load_dwordx4 v2, s[{(SWA,SWB)[mat]}:{(SWA,SWB)[mat]+3}], s56 offen lds"); vq.issue(("W",ks)); vq.nis[("W",ks)]=vq.nis.get(("W",ks),0)+1
    def dX(vq, p, t):
        sl=XBASE+(p%NXS)*XSLOT; po=f"s{4+p%3}" if ROT_F else str(p*128)
        if t==0:   k.e(f"s_add_u32 m0, s{S_W1K}, {sl}\ns_mov_b32 s56, {po}\ns_mov_b64 exec, s[80:81]\nbuffer_load_dwordx4 v4, s[{SX}:{SX+3}], s56 offen lds\ns_mov_b64 exec, -1")
        elif t==1: k.e(f"s_add_u32 m0, s{S_W1K}, {sl+8192}\ns_add_u32 s56, s63, {po}\ns_mov_b64 exec, s[82:83]\nbuffer_load_dwordx4 v5, s[{SX}:{SX+3}], s56 offen lds\ns_mov_b64 exec, -1")
        else:      k.e(f"s_mul_i32 s56, s66, {p%NXS}\ns_add_u32 m0, s65, s56\ns_add_u32 s56, s64, {po}\nbuffer_load_dwordx4 v5, s[{SX}:{SX+3}], s56 offen lds")
        vq.issue(("X",p)); vq.nis[("X",p)]=vq.nis.get(("X",p),0)+1
    gW=lambda ks: [("W",ks,0),("W",ks,1)]
    gX=lambda p: [("X",p,0),("X",p,1),("X",p,2)]
    run=lambda vq,d: (dW if d[0]=="W" else dX)(vq,d[1],d[2])
    vq.nis={}
    allp=[gW(0)+gX(0), gW(1), gW(2)+gX(1), gW(3), gW(4)+gX(2)]
    st_row_load(k, vq)
    for d in allp[0]: run(vq,d)
    pend0=[d for g in allp[F_PRO:] for d in g]
    srd(k, SWS, 34, 35, WS_BYTES); srd(k, SDBG, 32, 33, 256)
    lab=k.lab("nn")
    k.e(f"""
    s_or_b32 s56, s2, s{S_W}
    s_cmp_lg_u32 s56, 0
    s_cbranch_scc1 {lab}
    s_memrealtime s[58:59]
    s_waitcnt lgkmcnt(0)
    s_or_b32 s58, s58, 1
    v_mov_b32 v12, s58
    v_mov_b32 v13, s59
    v_mov_b32 v14, 0
    s_mov_b64 exec, 1
    buffer_store_dwordx2 v[12:13], v14, s[{SDBG}:{SDBG+3}], 0 offen sc0 sc1
    s_mov_b64 exec, -1
    {lab}:
    """)
    x_read_addr(k, 6, 7, 16)
    k.e(f"""
    s_lshr_b32 s56, s{S_W}, 2
    s_mul_i32 s56, s56, {6*2048}
    s_add_u32 s56, s56, {XBASE}
    v_add_u32 v6, s56, v6
    v_add_u32 v7, s56, v7
    v_lshrrev_b32 v18, 2, v16
    v_and_b32 v19, 3, v16
    v_and_b32 v20, 1, v17
    v_lshl_or_b32 v20, v20, 2, v18
    v_lshl_add_u32 v18, v17, 3, v18
    v_lshlrev_b32 v18, 8, v18
    v_lshl_add_u32 v18, v19, 3, v18
    s_and_b32 s56, s{S_W}, 3
    s_lshl_b32 s56, s56, 1
    v_xor_b32 v21, s56, v20
    v_xor_b32 v22, 1, v21
    v_lshl_add_u32 v8, v21, 5, v18
    v_lshl_add_u32 v9, v22, 5, v18
    v_add_u32 v10, 0xc000, v8
    v_add_u32 v11, 0xc000, v9
    v_lshrrev_b32 v16, 3, v1
    v_and_b32 v17, 1, v16
    v_lshrrev_b32 v16, 1, v16
    v_mul_u32_u24 v16, {XSLOT}, v16
    v_mul_u32_u24 v17, {96*128}, v17
    v_and_b32 v18, 7, v1
    v_lshlrev_b32 v18, 4, v18
    v_add3_u32 v16, v16, v17, v18
    v_add_u32 v16, {XBASE}, v16
    v_mov_b32 v20, 0x3f803f80
    v_mov_b32 v21, 0x3f803f80
    v_mov_b32 v22, 0x3f803f80
    v_mov_b32 v23, 0x3f803f80
    s_mov_b32 exec_hi, 0xffff
    ds_write_b128 v16, v[20:23]
    s_mov_b32 exec_hi, -1
    s_bitcmp1_b32 s{S_PJ}, 0
    s_cselect_b32 s92, 6, 0
    s_cselect_b32 s93, 3, 1
    s_cselect_b32 s94, 8, 2
    s_cselect_b32 s95, 5, 4
    s_lshr_b32 s{S_PJ}, s{S_PJ}, 1
    s_lshl_b32 s56, s{S_W}, 6
    v_add_u32 v{VGL}, s56, v1
    v_cmp_lt_u32 vcc, 95, v{VGL}
    v_cmp_ne_u32 s[58:59], 0, v{VGL}
    s_movk_i32 s56, 96
    v_cmp_ne_u32 s[60:61], s56, v{VGL}
    v_subbrev_co_u32 v{VGA}, vcc, 1, v{VGL}, vcc
    s_and_b64 s[58:59], s[58:59], s[60:61]
    v_cmp_gt_u32 vcc, 176, v{VGL}
    v_add_u32 v{VGA}, s62, v{VGA}
    s_and_b64 s[58:59], s[58:59], vcc
    s_movk_i32 s56, 2048
    v_cmp_gt_u32 s[60:61], s56, v{VGA}
    v_lshlrev_b32 v{VGA}, 4, v{VGA}
    v_add_u32 v{VGA}, {STATS_OFF}, v{VGA}
    s_and_b64 s[84:85], s[58:59], s[60:61]
    v_lshlrev_b32 v{VGL}, 4, v{VGL}
    v_add_u32 v{VGL}, {F_STAT}, v{VGL}
    v_lshlrev_b32 v16, 4, v1
    v_add_u32 v16, {F_DUMMY}, v16
    v_cndmask_b32 v{VGL}, v16, v{VGL}, vcc
    """)
    w2_setup(k, 16, 77)
    p2_addr(k, 4, 16)
    area_base(k, 7, 65536, 104448); area_base(k, 8, 32768, 120832); area_base(k, 10, 49152, 81920)
    for d in allp[1]: run(vq,d)
    touch1(k, vq)
    srd(k, SMIX, 28, 29, 1792*896)
    vwait(k, vq, lambda t: t==("ROW",))
    stats_compute(k, ZST, ZST+4)
    for g in allp[2:F_PRO]:
        for d in g: run(vq,d)
    vwait(k, vq, lambda t: t in (("W",0),("X",0)), "lgkmcnt(0)")
    k.e("s_barrier")
    stamp(k,1)
    def body(NM, hf):
        import copy
        vq_=Q(); vq_.q=list(vq.q); vq_.nis=dict(vq.nis); pend=list(pend0)
        return body2(NM,hf,vq_,pend)
    def body2(NM, hf, vq, pend):
        D_=lambda i: w2_dma(k,vq,i,F_AREA[i],SMIX,SWA)
        TR=lambda i: w2_tr(k,vq,i,F_AREA[i],TT,F_ZI[i])
        def reads(ks):
            L=[]; P=ks&1; slot=ks%NWS
            wb=(8,9) if slot<3 else (10,11); so=(slot if slot<3 else slot-3)*WSLOT; xs=(ks>>1)%NXS
            xr=lambda m: L.append(f"ds_read_b128 v[{AF[P]+m*4}:{AF[P]+m*4+3}], v{6+(ks&1)} offset:{xs*XSLOT+m*2048}")
            xr(0)
            for mat in range(2):
                for T in range(2):
                    b=BF[P]+(mat*2+T)*4
                    for h in range(2): L.append(f"ds_read_b64_tr_b16 v[{b+2*h}:{b+2*h+1}], v{wb[T]} offset:{so+mat*8192+h*1024}")
            for m in range(1,NM): xr(m)
            return L
        def mfmas(ks):
            P=ks&1; L=[]
            for m in range(NM):
                for n in range(4):
                    a=ACC+(m*4+n)*4; c="0" if ks==0 else f"v[{a}:{a+3}]"
                    L.append(f"v_mfma_f32_16x16x32_bf16 v[{a}:{a+3}], v[{BF[P]+n*4}:{BF[P]+n*4+3}], v[{AF[P]+m*4}:{AF[P]+m*4+3}], {c}")
            return L
        for r in reads(0): k.e(r)
        for ks in range(14):
            if ks<13: assert vq.nis.get(("W",ks+1))==2 and vq.nis.get(("X",(ks+1)>>1))==3, ks
            vwait(k, vq, lambda t: (t[0]=="W" and t[1]<=ks+1) or (t[0]=="X" and t[1]<=(ks+1)>>1), "lgkmcnt(0)")
            k.e("s_barrier")
            if KST: stamp(k,10+ks)
            if ks+5<14: pend+=gW(ks+5)
            if ks&1 and (ks>>1)+3<7: pend+=gX((ks>>1)+3)
            now=[(lambda d=d: run(vq,d)) for d in pend[:F_BUD]]; del pend[:F_BUD]
            if ks==0: now.append(lambda: st_nonce_load(k,vq))
            if ks==3: now.insert(0,lambda: st_publish(k,vq))
            if ks==T2KS:
                def t2():
                    k.e(f"""
                    v_lshlrev_b32 v{G4}, 7, v1
                    v_mov_b32 v{G4+1}, {OOB}
                    v_cmp_gt_u32 vcc, 11, v1
                    s_mul_i32 s56, s91, {75*128}
                    buffer_load_dword v{VDUM}, v{G4}, s[{SMIX}:{SMIX+3}], s56 offen
                    v_cndmask_b32 v{G4+2}, v{G4+1}, v{G4}, vcc
                    v_cmp_gt_u32 vcc, 19, v1
                    s_add_u32 s56, s56, 8192
                    buffer_load_dword v{VDUM}, v{G4+2}, s[{SMIX}:{SMIX+3}], s56 offen
                    v_cndmask_b32 v{G4+2}, v{G4+1}, v{G4}, vcc
                    s_mov_b32 s{SDBG}, s20
                    s_mov_b32 s{SDBG+1}, s21
                    s_mov_b32 s{SDBG+2}, {448*896}
                    s_mul_i32 s56, s91, {19*128}
                    buffer_load_dword v{VDUM}, v{G4+2}, s[{SDBG}:{SDBG+3}], s56 offen
                    """)
                    for _ in range(3): vq.issue(("T2",))
                now.append(t2)
            if ks==9: now.append(lambda: st_gran_load(k,vq))
            if ks==11:
                def gc():
                    st_gran_check(k, vq)
                    k.e(f"""
                    v_rcp_f32 v{G4+2}, v{G4+1}
                    v_mul_f32 v{G4+3}, v{G4+1}, v{G4+1}
                    v_sub_f32 v{G4}, 0, v{G4}
                    v_mul_f32 v{G4+1}, {hex(f2u(C0))}, v{G4+2}
                    v_mul_f32 v{VGA}, v{G4+2}, v{G4+2}
                    v_mul_f32 v{G4+2}, v{G4+2}, v{VGA}
                    v_mul_f32 v{G4+2}, {hex(f2u(C1))}, v{G4+2}
                    ds_write_b128 v{VGL}, v[{G4}:{G4+3}]
                    """)
                now.append(gc)
            if ks>=10: now=D_(ks-10)+now
            emit_kstep(k, mfmas(ks), reads(ks+1) if ks<13 else [], now, 0, NM*4)
        assert not pend
        stamp(k,2)
        CS=Z[2]
        k.e("s_setprio 0" if hf==0 else "s_setprio 1")
        srd(k, SWA, 20, 21, 448*896)
        k.e(f"""
        v_and_b32 v4, 15, v1
        v_lshlrev_b32 v4, 4, v4
        v_add_u32 v4, {F_STAT+hf*96*16}, v4
        ds_read_b128 v[{G4}:{G4+3}], v4
        v_lshlrev_b32 v5, 4, v1
        s_mul_i32 s62, s{S_J}, {11*A2_VT}
        s_lshl_b32 s63, s{S_CG}, 2
        s_and_b32 s56, s{S_W}, 3
        s_add_u32 s63, s63, s56
        s_lshl_b32 s63, s63, 10
        s_add_u32 s62, s62, s63
        s_add_u32 s62, s62, {hf*6*A2_VT}
        s_lshl_b32 s63, s{S_J}, 7
        s_lshl_b32 s56, s{S_CG}, 3
        s_add_u32 s63, s63, s56
        s_add_u32 s63, s63, {FLAG_OFF}
        """)
        for r in range(16): k.e(f"v_mov_b32_dpp v{CS+r}, v{ACC+r} row_newbcast:0 row_mask:0xf bank_mask:0xf")
        def tile(m, side):
            a=ACC+m*16; st=G4; T=[2,6,8,10]
            P=lambda x: f"v[{x}:{x+1}]"
            K0=176; S2=178
            L=["s_waitcnt lgkmcnt(0)", f"v_mov_b32 v{K0}, v{st+1}", f"v_mov_b32 v{S2}, v{st+3}"]
            for r in range(4): L.append(f"v_pk_fma_f32 {P(a+2*r)}, {P(st)}, {P(CS+2*r)}, {P(a+2*r)} op_sel_hi:[0,1,1]")
            for r in range(4): L.append(f"v_pk_mul_f32 {P(T[r])}, {P(a+2*r)}, {P(a+2*r)}")
            for r in range(4): L.append(f"v_pk_fma_f32 {P(T[r])}, {P(T[r])}, {P(st+2)}, {P(K0)} op_sel_hi:[1,0,0]")
            for r in range(4): L.append(f"v_pk_mul_f32 {P(T[r])}, {P(T[r])}, {P(a+2*r)}")
            for r in range(4): L+= [f"v_exp_f32 v{T[r]}, v{T[r]}", f"v_exp_f32 v{T[r]+1}, v{T[r]+1}", f"v_pk_fma_f32 {P(a+8+2*r)}, {P(st)}, {P(CS+8+2*r)}, {P(a+8+2*r)} op_sel_hi:[0,1,1]"]
            for r in range(4): L.append(f"v_pk_fma_f32 {P(T[r])}, {P(T[r])}, {P(S2)}, {P(S2)} op_sel_hi:[1,0,0]")
            for r in range(4): L+= [f"v_rcp_f32 v{T[r]}, v{T[r]}", f"v_rcp_f32 v{T[r]+1}, v{T[r]+1}", f"v_pk_mul_f32 {P(a+2*r)}, {P(a+2*r)}, {P(a+8+2*r)}"]
            for r in range(4): L.append(f"v_pk_mul_f32 {P(a+2*r)}, {P(a+2*r)}, {P(T[r])}")
            if m+1<NM: L.append(f"ds_read_b128 v[{G4}:{G4+3}], v4 offset:{(m+1)*256}")
            for r in range(4): L.append(f"v_cvt_pk_bf16_f32 v{a+8+r}, v{a+2*r}, v{a+2*r+1}")
            for c,l in enumerate(L):
                k.e(l)
                if side and c%10==5: side.pop(0)()
            while side: side.pop(0)()
            k.e(f"s_add_u32 s56, s62, {m*A2_VT}\nbuffer_store_dwordx4 v[{a+8}:{a+11}], v5, s[{SWS}:{SWS+3}], s56 offen {STF}"); vq.issue(("H",))
        tile(0,[]); TR(0)
        for m in range(1,5):
            tile(m, D_(m+3)); TR(m)
            if m==1: stamp(k,24)
            if m==3: stamp(k,25)
        if NM==6: tile(5, D_(8))
        else:
            k.e("s_waitcnt lgkmcnt(0)")
            for f in D_(8): f()
        stamp(k,3)
        return vq
    k.e(f"s_cmp_ge_u32 s{S_W}, 4\ns_cbranch_scc1 kF_h1")
    vq0=body(6,0)
    k.e("s_branch kF_join\nkF_h1:")
    vq1=body(5,1)
    k.e("kF_join:\ns_setprio 0")
    vb=Both(vq0,vq1)
    def fin():
        for i in range(5,9): w2_tr(k,vb,i,F_AREA[i],8,F_ZI[i])
    gen_P2(k, vb, 4, F_ZI, fin, 16, [80+4*i for i in range(8)], ("H",), 63)
    k.e("s_endpgm")

SLOT=49152; A_STAT=3*SLOT; AWOFF=26*1024
A_ACC=16; A_H=88; A_XF=96; A_WF=128; XO=192
def gen_A(k):
    vq=Q(); S_RG=S_J; S_HP=S_CG
    k.e(f"""
    kA:
    s_mul_i32 s60, s58, 11
    s_add_u32 s60, s60, s57
    s_sub_u32 s60, s60, 21
    s_lshr_b32 s{S_RG}, s60, 2
    s_and_b32 s60, s60, 3
    s_lshl_b32 s{S_HP}, s59, 2
    s_add_u32 s{S_HP}, s{S_HP}, s60
    s_mul_i32 s62, s{S_RG}, 192
    s_mul_i32 s60, s56, 11
    s_add_u32 s60, s60, s57
    s_sub_u32 s60, s60, 21
    s_mul_i32 s{S_PJ}, s60, 293
    s_lshr_b32 s{S_PJ}, s{S_PJ}, 11
    s_mul_i32 s63, s{S_PJ}, 7
    s_sub_u32 s{S_CT}, s60, s63
    v_lshrrev_b32 v10, 3, v1
    v_and_b32 v11, 7, v1
    v_lshrrev_b32 v12, 4, v1
    s_and_b32 s60, s{S_W}, 1
    s_lshl_b32 s60, s60, 2
    v_xor_b32 v13, v11, v12
    v_xor_b32 v13, s60, v13
    s_lshl_b32 s60, s{S_W}, 3
    s_add_u32 s60, s60, s62
    s_sub_u32 s60, s60, 16
    v_add_u32 v10, s60, v10
    s_movk_i32 s63, 896
    v_mul_lo_u32 v4, v10, s63
    v_lshl_add_u32 v4, v13, 4, v4
    v_add_u32 v5, {64*896}, v4
    v_mov_b32 v14, {OOB}
    v_cmp_gt_i32 vcc, 0, v10
    s_mov_b64 s[80:81], -1
    s_cmp_eq_u32 s{S_W}, 0
    s_cselect_b32 s80, 0xffffff00, s80
    v_cndmask_b32 v4, v4, v14, vcc
    s_mov_b32 s64, {(2**32+21)//22}
    s_mul_i32 s63, s{S_HP}, 112
    """)
    def wvoff(dst, uadd):
        k.e(f"""
        s_lshl_b32 s60, s{S_W}, 6
        s_add_i32 s60, s60, {uadd*64}
        v_add_u32 v10, s60, v1
        v_mul_hi_u32 v11, v10, s64
        v_mul_u32_u24 v12, 22, v11
        v_sub_u32 v12, v10, v12
        v_and_b32 v13, 0x33, v11
        v_bfe_u32 v14, v11, 2, 1
        v_lshl_or_b32 v13, v14, 3, v13
        v_bfe_u32 v14, v11, 3, 1
        v_lshl_or_b32 v13, v14, 2, v13
        v_mul_u32_u24 v13, 2688, v13
        v_mul_u32_u24 v14, 37, v12
        v_lshrrev_b32 v14, 8, v14
        v_mul_u32_u24 v15, {896-112}, v14
        v_lshl_add_u32 v15, v12, 4, v15
        v_add3_u32 v13, v13, v15, s63
        v_cmp_gt_u32 vcc, 21, v12
        v_mov_b32 v14, {OOB}
        s_nop 0
        v_cndmask_b32 v{dst}, v14, v13, vcc
        """)
    rot_setup(k, S_RG, S_HP, ROT_A)
    wvoff(6, -2)
    k.e("s_waitcnt lgkmcnt(0)")
    srd(k, SX, 16, 17, XB); srd(k, SWA, 18, 19, 448*2688)
    nis={}
    def dma(p, i):
        sl=(p%3)*SLOT+i*8192
        if i==0: k.e(f"s_add_u32 s3, s3, 1\ns_cmp_eq_u32 s3, 7\ns_cselect_b32 s3, 0, s3\ns_lshl_b32 s10, s3, 7\ns_mul_i32 s11, s3, {64*2688}")
        k.e(f"s_add_u32 m0, s{S_W1K}, {sl}")
        if i==0: k.e(f"s_mov_b64 exec, s[80:81]\nbuffer_load_dwordx4 v4, s[{SX}:{SX+3}], s10 offen lds\ns_mov_b64 exec, -1")
        elif i<3: k.e(f"s_add_u32 s56, s10, {(i-1)*64*896}\nbuffer_load_dwordx4 v5, s[{SX}:{SX+3}], s56 offen lds")
        elif i==3: k.e(f"s_mul_i32 s56, s65, s3\nbuffer_load_dwordx4 v6, s[{SMIX}:{SMIX+3}], s56 offen lds")
        else: k.e(f"s_nop 0\nbuffer_load_dwordx4 v{(2,3)[i-4]}, s[{SWA}:{SWA+3}], s11 offen lds")
        vq.issue(("S",p)); nis[p]=nis.get(p,0)+1
    stage=lambda p: [ (lambda i=i: dma(p,i)) for i in range(6)]
    pend=stage(0)+stage(1)+stage(2)
    st_row_load(k, vq)
    for _ in range(3): pend.pop(0)()
    k.e(f"""
    v_add_u32 v10, {128*896}, v5
    s_cmp_lt_u32 s{S_W}, 2
    s_cselect_b64 vcc, -1, 0
    v_cndmask_b32 v6, v6, v10, vcc
    s_movk_i32 s65, 128
    s_cselect_b32 s65, s65, {64*2688}
    s_cselect_b32 s{SMIX}, s16, s18
    s_cselect_b32 s{SMIX+1}, s17, s19
    s_cselect_b32 s{SMIX+2}, s{SX+2}, s{SWA+2}
    s_mov_b32 s{SMIX+3}, 0x20000
    """)
    pend.pop(0)()
    wvoff(2, 6); pend.pop(0)()
    wvoff(3, 14); pend.pop(0)()
    srd(k, SWS, 34, 35, WS_BYTES); srd(k, SDBG, 32, 33, 256); srd(k, SWB, 28, 29, 1792*896)
    k.e(f"s_lshr_b32 s66, s{S_W}, 1\ns_and_b32 s64, s{S_W}, 1\ns_mul_i32 s60, s66, {3*2048}")
    x_read_addr(k, 7, 8, 16)
    k.e(f"""
    v_add_u32 v{XO}, s60, v7
    v_add_u32 v{XO+1}, s60, v8
    v_lshrrev_b32 v18, 2, v16
    v_and_b32 v19, 3, v16
    v_lshrrev_b32 v20, 1, v17
    v_lshl_add_u32 v18, v20, 4, v18
    v_and_b32 v20, 1, v17
    v_lshl_add_u32 v18, v20, 2, v18
    v_mul_u32_u24 v18, 352, v18
    s_mul_i32 s60, s64, 56
    s_add_u32 s60, s60, {AWOFF}
    v_add_u32 v18, s60, v18
    v_lshl_add_u32 v9, v19, 3, v18
    v_min_u32 v19, 2, v19
    v_lshl_add_u32 v{XO+2}, v19, 3, v18
    v_add_u32 v{XO+2}, 32, v{XO+2}
    s_bitcmp1_b32 s66, 0
    s_cselect_b64 vcc, -1, 0
    v_cndmask_b32 v{XO+3}, v9, v{XO+2}, vcc
    v_add_u32 v{XO+4}, 224, v{XO+3}
    s_lshr_b32 s60, s66, 1
    s_mul_i32 s60, s60, 112
    v_add_u32 v{XO+3}, s60, v{XO+3}
    v_lshrrev_b32 v16, 3, v1
    v_mul_u32_u24 v16, {SLOT}, v16
    v_and_b32 v17, 7, v1
    v_lshl_add_u32 v16, v17, 4, v16
    v_mov_b32 v20, 0x3f803f80
    v_mov_b32 v21, 0x3f803f80
    v_mov_b32 v22, 0x3f803f80
    v_mov_b32 v23, 0x3f803f80
    s_mov_b64 exec, 0xffffff
    ds_write_b128 v16, v[20:23]
    s_mov_b64 exec, -1
    s_mov_b32 s92, 7
    s_mov_b32 s93, 9
    s_mov_b32 s94, 10
    s_mov_b32 s95, 10
    s_lshl_b32 s56, s{S_W}, 6
    v_add_u32 v{VGL}, s56, v1
    s_sub_u32 s56, s62, 16
    v_add_u32 v{VGA}, s56, v{VGL}
    v_cmp_gt_u32 vcc, 208, v{VGL}
    s_movk_i32 s56, 2048
    v_cmp_gt_u32 s[60:61], s56, v{VGA}
    v_lshlrev_b32 v{VGA}, 4, v{VGA}
    v_add_u32 v{VGA}, {STATS_OFF}, v{VGA}
    s_and_b64 s[84:85], vcc, s[60:61]
    v_lshlrev_b32 v{VGL}, 2, v{VGL}
    v_add_u32 v{VGL}, {A_STAT}, v{VGL}
    v_mov_b32 v16, {A_STAT+2048}
    v_cndmask_b32 v{VGL}, v16, v{VGL}, vcc
    s_mov_b32 s77, 1
    """)
    w2_setup(k, 16, 77)
    p2_addr(k, 3, 16)
    area_base(k, 7, 81920, 131072)
    AREA={0:49152,1:98304,2:"s7",3:49152,4:98304,5:"s7",6:49152,7:98304,8:"s7"}
    ZI=[208,224,160,176,192,96,128,144,240]
    D_=lambda i: w2_dma(k,vq,i,AREA[i],SWB,SWA)
    TR=lambda i,tmp=TT: w2_tr(k,vq,i,AREA[i],tmp,ZI[i])
    RADDR=[7,8,XO,XO+1,9,XO+2,XO+3,XO+4]
    cur={"slot":0}
    def setslot(s):
        d=(s-cur["slot"])*SLOT
        if d:
            for r in RADDR: k.e(f"v_add_u32 v{r}, {d&0xffffffff}, v{r}")
        cur["slot"]=s
    def reads(ks):
        P=ks&1; L=[]
        def tr(fr, areg, off):
            b=A_WF+P*32+fr*4
            for h in range(2): L.append(f"ds_read_b64_tr_b16 v[{b+2*h}:{b+2*h+1}], v{areg} offset:{(ks&1)*32*352+off+h*8*352}")
        xr=lambda fr,areg,off: L.append(f"ds_read_b128 v[{A_XF+P*16+fr*4}:{A_XF+P*16+fr*4+3}], v{areg} offset:{off}")
        xr(0, XO+(ks&1), 2048)
        for sec in range(3): tr(sec*2, 9, sec*112); tr(sec*2+1, XO+2, sec*112)
        xr(1, XO+(ks&1), 4096); xr(2, XO+(ks&1), 6144); xr(3, 7+(ks&1), 0)
        tr(6, XO+3, 0); tr(7, XO+4, 0)
        return L
    def mfmas(ks):
        P=ks&1; L=[]
        def mm(a, fr, xf, ct):
            w=A_WF+P*32+fr*4; x=A_XF+P*16+xf*4; cc="0" if ks==0 else f"v[{a}:{a+3}]"
            A,B=(w,x) if ct else (x,w)
            L.append(f"v_mfma_f32_16x16x32_bf16 v[{a}:{a+3}], v[{A}:{A+3}], v[{B}:{B+3}], {cc}")
        for m in range(3):
            for t in range(6): mm(A_ACC+(m*6+t)*4, t, m, t<4)
        mm(A_H, 6, 3, True); mm(A_H+4, 7, 3, False)
        return L
    if T1:
        k.e(f"s_mov_b64 s[4:5], s[{SMIX}:{SMIX+1}]\ns_mov_b32 s6, s{SMIX+2}")
        touch1(k, vq)
        k.e(f"s_mov_b64 s[{SMIX}:{SMIX+1}], s[4:5]\ns_mov_b32 s{SMIX+2}, s6")
    vwait(k, vq, lambda t: t==("ROW",))
    stats_compute(k, ZST, ZST+4)
    for _ in range(A_PRO-6): pend.pop(0)()
    vwait(k, vq, lambda t: t==("S",0), "lgkmcnt(0)")
    k.e("s_barrier")
    stamp(k,1)
    for i,s_ in enumerate(reads(0)):
        if i==14: k.e("s_waitcnt lgkmcnt(6)")
        k.e(s_)
    for ks in range(14):
        p=ks>>1
        if ks&1 and ks<13:
            assert nis.get(p+1,0)==6, (ks,nis)
            vwait(k, vq, lambda t: t[0]=="S" and t[1]<=p+1, "lgkmcnt(0)")
            k.e("s_barrier")
            setslot((p+1)%3)
            if p+3<7: pend+=stage(p+3)
        else: k.e("s_waitcnt lgkmcnt(0)")
        if KST: stamp(k,10+ks)
        now=pend[:A_BUD]; del pend[:A_BUD]
        if ks==0: now.append(lambda: st_nonce_load(k,vq))
        if ks==3: now.insert(0,lambda: st_publish(k,vq))
        if ks==9: now.append(lambda: st_gran_load(k,vq))
        if ks==11:
            def gc():
                st_gran_check(k, vq)
                k.e(f"""
                v_rcp_f32 v{G4+1}, v{G4+1}
                v_sub_f32 v{G4}, 0, v{G4}
                v_cndmask_b32 v{G4}, 0, v{G4}, s[84:85]
                v_cndmask_b32 v{G4+1}, 0, v{G4+1}, s[84:85]
                ds_write2st64_b32 v{VGL}, v{G4}, v{G4+1} offset0:0 offset1:4
                """)
            now.append(gc)
        if ks>=11: now=D_(ks-11)+now
        emit_kstep(k, mfmas(ks), reads(ks+1) if ks<13 else [], now, ((ks+1)&1)*20, 40, rd2=6)
    assert not pend
    stamp(k,2)
    k.e("s_setprio 0")
    srd(k, SWA, 20, 21, 448*896)
    side=[]; cnt={"c":0}
    def E(txt, every=8):
        for l in txt.split("\n"):
            if not l.strip(): continue
            k.e(l); cnt["c"]+=1
            if side and cnt["c"]%every==0 and not l.strip().startswith(("s_cmp","s_cselect","s_bitcmp")): side.pop(0)()
    E(f"""
    v_lshlrev_b32 v2, 4, v1
    s_mul_i32 s60, s64, 6144
    s_lshl_b32 s61, s66, 10
    s_add_u32 s61, s61, s60
    v_add_u32 v3, s61, v2
    s_and_b32 s61, s66, 1
    s_lshl_b32 s61, s61, 10
    s_add_u32 s61, s61, s60
    v_add_u32 v4, s61, v2
    s_lshl_b32 s61, s{S_W}, 12
    v_add_u32 v5, s61, v2
    {"s_nop 15" if env("DNOP",0) else ""}
    {"s_nop 15" if env("DNOP",0) else ""}
    {"s_nop 15" if env("DNOP",0) else ""}
    s_barrier
    ds_write_b128 v3, v[{A_H}:{A_H+3}]
    ds_write_b128 v4, v[{A_H+4}:{A_H+7}] offset:4096
    """)
    for t in range(4):
        a=A_ACC+(2*6+2+t)*4
        E(f"ds_write_b128 v5, v[{a}:{a+3}] offset:{12288+t*1024}")
    CSQ=96; CSK=104; CSV=[112,114]; NMU=[116,118,120,122]; RS=[124,126,192,194]; SEL=[113,115,117,119]; PK=128; PV=136; V0=144; V1=152; VS=88
    E(f"""
    v_lshrrev_b32 v3, 4, v1
    v_lshlrev_b32 v4, 8, v3
    v_add_u32 v4, s60, v4
    v_and_b32 v5, 15, v1
    v_lshlrev_b32 v6, 4, v5
    v_add_u32 v6, s60, v6
    s_add_u32 s61, s60, 2048
    s_lshl_b32 s63, s{S_W}, 12
    s_add_u32 s63, s63, {12288-8192}
    s_cmp_eq_u32 s66, 0
    s_cselect_b32 s61, s61, s63
    v_add_u32 v7, s61, v2
    s_mul_i32 s61, s66, {48*4}
    s_add_u32 s61, s61, {A_STAT}
    v_lshl_add_u32 v8, v5, 2, s61
    v_lshl_add_u32 v9, v3, 4, s61
    """)
    for i in range(4): E(f"ds_read_b32 v{NMU[i]}, v8 offset:{i*64}\nds_read_b32 v{RS[i]}, v8 offset:{1024+i*64}")
    E(f"""
    v_and_b32 v12, 1, v5
    v_cmp_eq_u32 s[86:87], 1, v12
    v_lshl_add_u32 v13, v3, 2, v12
    v_cmp_le_u32 s[88:89], v13, v5
    v_add_u32 v13, 2, v13
    v_cmp_le_u32 s[90:91], v13, v5
    v_cmp_eq_u32 s[82:83], 3, v3
    s_or_b32 s61, s{S_RG}, s66
    s_cmp_eq_u32 s61, 0
    s_cselect_b64 s[80:81], -1, 0
    v_mov_b32 v12, 0x0c0c0100
    v_mov_b32 v13, 0x01000c0c
    v_cndmask_b32 v12, v12, v13, s[86:87]
    v_mov_b32 v13, 0x0c0c0302
    v_mov_b32 v14, 0x03020c0c
    v_cndmask_b32 v13, v13, v14, s[86:87]
    v_mov_b32 v14, 0x0c0c0c0c
    v_cndmask_b32 v{SEL[0]}, v12, v14, s[88:89]
    v_cndmask_b32 v{SEL[1]}, v13, v14, s[90:91]
    v_cndmask_b32 v{SEL[2]}, v14, v12, s[88:89]
    v_cndmask_b32 v{SEL[3]}, v14, v13, s[90:91]
    s_waitcnt lgkmcnt(0)
    s_barrier
    ds_read_b128 v[{CSK}:{CSK+3}], v4 offset:2048
    ds_read_b128 v[{CSK+4}:{CSK+7}], v4 offset:3072
    ds_read_b128 v[{CSQ}:{CSQ+3}], v4
    ds_read_b128 v[{CSQ+4}:{CSQ+7}], v4 offset:1024
    ds_read_b128 v[{PK}:{PK+3}], v7
    ds_read_b128 v[{PK+4}:{PK+7}], v7 offset:1024
    ds_read_b32 v{CSV[0]}, v6 offset:4096
    ds_read_b32 v{CSV[1]}, v6 offset:5120
    ds_read_b128 v[{PV}:{PV+3}], v7 offset:2048
    ds_read_b128 v[{PV+4}:{PV+7}], v7 offset:3072
    ds_read_b128 v[{VS}:{VS+3}], v9
    ds_read_b128 v[{VS+4}:{VS+7}], v9 offset:1024
    """)
    P=lambda x: f"v[{x}:{x+1}]"
    def foldT(a, cs, i):
        s_=""
        for r in range(0,8,2): s_+=f"v_pk_fma_f32 {P(a+r)}, {P(NMU[i])}, {P(cs+r)}, {P(a+r)} op_sel_hi:[0,1,1]\n"
        for r in range(0,8,2): s_+=f"v_pk_mul_f32 {P(a+r)}, {P(RS[i])}, {P(a+r)} op_sel_hi:[0,1]\n"
        for r in range(4): s_+=f"v_cvt_pk_bf16_f32 v{a+r}, v{a+2*r}, v{a+2*r+1}\n"
        return s_
    def foldV(a, i):
        s_=""
        for t in range(2):
            for r in (0,2): s_+=f"v_pk_fma_f32 {P(a+4*t+r)}, {P(VS+r)}, {P(CSV[t])}, {P(a+4*t+r)} op_sel_hi:[1,0,1]\n"
        for t in range(2):
            for r in (0,2): s_+=f"v_pk_mul_f32 {P(a+4*t+r)}, {P(VS+4+r)}, {P(a+4*t+r)}\n"
        for t in range(2):
            d=(V0,V1)[t]+2*i
            s_+=f"v_cvt_pk_bf16_f32 v{d}, v{a+4*t}, v{a+4*t+1}\nv_cvt_pk_bf16_f32 v{d+1}, v{a+4*t+2}, v{a+4*t+3}\n"
        if i<3: s_+=f"ds_read_b128 v[{VS}:{VS+3}], v9 offset:{(i+1)*64}\nds_read_b128 v[{VS+4}:{VS+7}], v9 offset:{1024+(i+1)*64}\n"
        return s_
    am=lambda m: A_ACC+m*24
    KFr=lambda i: PK if i==0 else am(i-1)+8
    E("s_waitcnt lgkmcnt(8)")
    E(foldT(am(0)+8, CSK, 1)); E(foldT(am(0), CSQ, 1))
    E("s_waitcnt lgkmcnt(0)")
    TR(0)
    if TRW: k.e("s_waitcnt lgkmcnt(0)")
    E(foldT(PK, CSK, 0)); E(foldV(PV, 0))
    def smm(m):
        q=am(m)
        E(f"v_cndmask_b32 v{q+2}, v{q+2}, 0, s[82:83]\nv_cndmask_b32 v{q+3}, v{q+3}, 0, s[82:83]\ns_nop 1")
        k.e(f"v_mfma_f32_16x16x32_bf16 v[{q+4}:{q+7}], v[{KFr(m)}:{KFr(m)+3}], v[{q}:{q+3}], 0")
        k.e(f"v_mfma_f32_16x16x32_bf16 v[{q+12}:{q+15}], v[{KFr(m+1)}:{KFr(m+1)+3}], v[{q}:{q+3}], 0")
    smm(0)
    for m in (1,2):
        E(foldT(am(m)+8, CSK, m+1)); E(foldT(am(m), CSQ, m+1))
        smm(m)
        E("s_waitcnt lgkmcnt(0)")
        side.extend(D_(m+2)); TR(m)
        if TRW: k.e("s_waitcnt lgkmcnt(0)")
        E(foldV(am(m-1)+16, m))
    E("s_waitcnt lgkmcnt(0)")
    side.extend(D_(5))
    E(foldV(am(2)+16, 3))
    CSC=1.0/math.sqrt(28.0)*math.log2(math.e)
    E(f"""
    s_mul_i32 s61, s66, 48
    s_add_u32 s61, s61, s62
    v_add_u32 v2, s61, v5
    s_lshl_b32 s63, s{S_HP}, 1
    s_add_u32 s63, s63, s64
    s_add_u32 s63, s63, 56
    s_lshl_b32 s63, s63, 10
    s_mov_b32 s58, {(2**32+173)//174}
    s_mov_b32 s59, {hex(f2u(CSC))}
    s_movk_i32 s60, 2048
    v_mov_b32 v12, 0xff800000
    """)
    X=lambda m: am(m)+16
    all3=lambda fmt: E("\n".join(fmt(m) for m in range(3)))
    all3(lambda m: f"v_cndmask_b32 v{X(m)}, v{am(m)+4}, v{am(m)+5}, s[86:87]\nv_cndmask_b32 v{X(m)+1}, v{am(m)+6}, v{am(m)+7}, s[86:87]\nv_cndmask_b32 v{X(m)+2}, v{am(m)+12}, v{am(m)+13}, s[86:87]\nv_cndmask_b32 v{X(m)+3}, v{am(m)+14}, v{am(m)+15}, s[86:87]")
    E(f"v_cndmask_b32 v{X(0)}, v{X(0)}, v12, s[80:81]\nv_cndmask_b32 v{X(0)+1}, v{X(0)+1}, v12, s[80:81]")
    all3(lambda m: f"v_cndmask_b32 v{X(m)}, v{X(m)}, v{X(m)+2}, s[88:89]\nv_cndmask_b32 v{X(m)+1}, v{X(m)+1}, v{X(m)+3}, s[90:91]")
    all3(lambda m: f"v_max_f32 v{X(m)+2}, v{X(m)}, v{X(m)+1}")
    def xred(op):
        for sw in ("v_permlane16_swap_b32","v_permlane32_swap_b32"):
            all3(lambda m: f"v_mov_b32 v{X(m)+3}, v{X(m)+2}")
            E("s_nop 1")
            all3(lambda m: f"{sw} v{X(m)+2}, v{X(m)+3}")
            E("s_nop 0")
            all3(lambda m: f"{op} v{X(m)+2}, v{X(m)+2}, v{X(m)+3}")
    xred("v_max_f32")
    all3(lambda m: f"v_sub_f32 v{X(m)}, v{X(m)}, v{X(m)+2}\nv_sub_f32 v{X(m)+1}, v{X(m)+1}, v{X(m)+2}")
    all3(lambda m: f"v_mul_f32 v{X(m)}, s59, v{X(m)}\nv_mul_f32 v{X(m)+1}, s59, v{X(m)+1}")
    all3(lambda m: f"v_exp_f32 v{X(m)}, v{X(m)}\nv_exp_f32 v{X(m)+1}, v{X(m)+1}")
    E("s_nop 0")
    all3(lambda m: f"v_add_f32 v{X(m)+2}, v{X(m)}, v{X(m)+1}")
    xred("v_add_f32")
    all3(lambda m: f"v_rcp_f32 v{X(m)+2}, v{X(m)+2}")
    E("s_nop 0")
    all3(lambda m: f"v_mul_f32 v{X(m)}, v{X(m)}, v{X(m)+2}\nv_mul_f32 v{X(m)+1}, v{X(m)+1}, v{X(m)+2}")
    all3(lambda m: f"v_cvt_pk_bf16_f32 v{X(m)}, v{X(m)}, v{X(m)+1}")
    all3(lambda m: "\n".join(f"v_perm_b32 v{X(m)+4+i}, v{X(m)}, v{X(m)}, v{SEL[i]}" for i in range(4)))
    E("s_nop 1")
    for m in range(3):
        k.e(f"v_mfma_f32_16x16x32_bf16 v[{am(m)}:{am(m)+3}], v[{V0+2*m}:{V0+2*m+3}], v[{X(m)+4}:{X(m)+7}], 0")
        k.e(f"v_mfma_f32_16x16x32_bf16 v[{am(m)+4}:{am(m)+7}], v[{V1+2*m}:{V1+2*m+3}], v[{X(m)+4}:{X(m)+7}], 0")
    for m in range(3):
        E(f"""
        v_mul_hi_u32 v12, v2, s58
        v_mul_u32_u24 v13, 174, v12
        v_sub_u32 v13, v2, v13
        v_cmp_lt_u32 vcc, 94, v13
        v_mul_u32_u24 v12, 11, v12
        v_mov_b32 v14, {OOB}
        v_addc_co_u32 v13, vcc, 1, v13, vcc
        v_lshrrev_b32 v15, 4, v13
        v_add_u32 v12, v12, v15
        v_mul_u32_u24 v12, {A2_VT}, v12
        v_and_b32 v13, 15, v13
        v_cmp_gt_u32 vcc, s60, v2
        v_lshl_add_u32 v12, v13, 4, v12
        v_lshl_add_u32 v12, v3, 8, v12
        v_add_u32 v2, 16, v2
        v_cndmask_b32 v{4+m}, v14, v12, vcc
        """)
    while side: side.pop(0)()
    for m in range(3):
        a=am(m)
        for r in range(4): k.e(f"v_cvt_pk_bf16_f32 v{a+8+r}, v{a+2*r}, v{a+2*r+1}")
        k.e(f"buffer_store_dwordx4 v[{a+8}:{a+11}], v{4+m}, s[{SWS}:{SWS+3}], s63 offen {STF}"); vq.issue(("O",))
    stamp(k,3)
    k.e(f"s_lshl_b32 s63, s{S_RG}, 6\ns_lshl_b32 s56, s{S_HP}, 3\ns_add_u32 s63, s63, s56\ns_add_u32 s63, s63, {AFLAG_OFF}")
    k.e(f"s_cmp_lt_u32 s{S_PJ}, 12\ns_cbranch_scc1 kA_p2\ns_waitcnt vmcnt(0)\ns_barrier\ns_cmp_lg_u32 s{S_W}, 0\ns_cbranch_scc1 k_done")
    flag_store(k,63)
    k.e("s_endpgm\nkA_p2:")
    def fin():
        for i in range(3,6):
            TR(i); k.e("s_waitcnt lgkmcnt(0)")
            for f in D_(i+3): f()
        TR(6); TR(7); TR(8,8)
    gen_P2(k, vq, 3, ZI, fin, 16, [64+4*i for i in range(8)], ("O",), 63)

def gen_all():
    k=K("kk")
    k.e(f"""
    s_cmp_ge_u32 s2, 256
    s_cbranch_scc1 k_done
    s_load_dwordx16 s[16:31], s[0:1], 0
    s_load_dwordx4 s[32:35], s[0:1], 64
    v_lshrrev_b32 v2, 6, v0
    v_and_b32 v1, 63, v0
    s_and_b32 s56, s2, 7
    v_readfirstlane_b32 s{S_W}, v2
    s_lshr_b32 s57, s2, 3
    s_lshr_b32 s58, s56, 1
    s_and_b32 s59, s56, 1
    s_lshl_b32 s{S_W1K}, s{S_W}, 10
    s_lshl_b32 s61, s2, 3
    s_add_u32 s61, s61, s{S_W}
    s_mul_i32 s61, s61, 896
    v_lshlrev_b32 v{ZST+4}, 4, v1
    v_mov_b32 v{ZST}, 0
    v_mov_b32 v{ZST+1}, 0
    v_mov_b32 v{ZST+2}, 0
    v_mov_b32 v{ZST+3}, 0
    """)
    stamp(k,0)
    k.e("s_cmp_ge_u32 s57, 21\ns_cbranch_scc1 kA")
    gen_F(k)
    gen_A(k)
    k.e("k_done:")
    return kernel_text(KNAME, k.text(), 256, 102)

HEADER=open("parallel_sum__sliding_local_dilated__geglu_ffn__prompt.s.ref").read().split("; @launch")[0]
if __name__=="__main__":
    out=sys.argv[1]
    t,d=gen_all()
    txt=HEADER+f"; @launch grid=(256,1,1) block=(512,1,1) lds={LDS_BYTES}\n"+'.amdgcn_target "amdgcn-amd-amdhsa--gfx950"\n.text\n'+t+'.section .rodata,"a"\n.p2align 6\n'+d
    open(out,"w").write(txt)
    print(out, len(txt), txt.count("\n"))
```

```python
import sys, math, os, struct
from asmlib import *
def env(n,d): return type(d)(os.environ.get(n,d))
STAMPS=env("STAMPS",0); KST=env("KST",0); STW=env("STW",7)
ROT_A=env("ROT_A",1); ROT_F=env("ROT_F",0); ROT2=env("ROT2",1); PRIO=env("PRIO",1)
F_PRO=env("F_PRO",3); F_BUD=env("F_BUD",4); A_PRO=env("A_PRO",9); A_BUD=env("A_BUD",4)
TRW=env("TRW",1); CPF=env("CPF",0)
T1=env("T1",0)
T2KS=env("T2KS",-1)
LDF=os.environ.get("LDF","sc1"); STF=os.environ.get("STF","sc1")
KNAME="parallel_sum__sliding_local_dilated__geglu_ffn__prompt_kernel"

NKS=72; A2_VT=NKS*1024
STATS_OFF=10*1024*1024; FLAG_OFF=STATS_OFF+65536; AFLAG_OFF=FLAG_OFF+8192
STAMP_OFF=32*1024*1024; WS_BYTES=0x10000000; XB=2048*896
OOB=0x80000000; LDS_BYTES=153600
C0=-2.0*math.sqrt(2.0/math.pi)*math.log2(math.e); C1=C0*0.044715
def f2u(x): return struct.unpack("<I",struct.pack("<f",x))[0]
SPIN=1<<15

class Q:
    def __init__(s, mx=63): s.q=[]; s.mx=mx
    def issue(s, tag): s.q.append(tag)
    def need(s, pred):
        last=-1
        for i,t in enumerate(s.q):
            if pred(t): last=i
        if last<0: return None
        n=len(s.q)-1-last; s.q=s.q[last+1:]
        return min(n, s.mx)
class Both:
    def __init__(s,a,b): s.a=a; s.b=b
    def issue(s,t): s.a.issue(t); s.b.issue(t)
    def need(s,p):
        c=[v for v in (s.a.need(p), s.b.need(p)) if v is not None]
        if not c: return None
        n=min(c)
        s.a.q=s.a.q[max(0,len(s.a.q)-n):] if n else []
        s.b.q=s.b.q[max(0,len(s.b.q)-n):] if n else []
        return n
def vwait(k, vq, pred, extra=""):
    n=vq.need(pred)
    if n is not None: k.e(f"s_waitcnt vmcnt({n}) {extra}")
    elif extra: k.e(f"s_waitcnt {extra}")

S_W=12; S_W1K=13; S_J=14; S_CG=15
SX=36; SWA=40; SWB=44; SWS=48; SMIX=52; SDBG=96
S_NON=68; S_PJ=70; S_CT=71; S_T0=72; S_ROT=76
G4=12; TT=240; VH=244; VO=245; VT=246; VPA=247; VGA=248; VGL=249; VOA=250; VDUM=251; ZST=224
def srd(k, d, lo, hi, size):
    k.e(f"s_mov_b32 s{d}, s{lo}\ns_mov_b32 s{d+1}, s{hi}\ns_mov_b32 s{d+2}, {size}\ns_mov_b32 s{d+3}, 0x20000")
def stamp(k, i):
    if STAMPS: k.e(f"s_memrealtime s[100:101]\ns_waitcnt lgkmcnt(0)\nv_writelane_b32 v0, s100, {i}\ns_memtime s[100:101]\ns_waitcnt lgkmcnt(0)\nv_writelane_b32 v0, s100, {32+i}")
DBGW=env("DBGW",-1)
def stamp_out(k):
    if not STAMPS: return
    if DBGW>=0:
        lab=k.lab("do")
        k.e(f"s_cmp_lg_u32 s{S_W}, {STW}\ns_cbranch_scc1 {lab}\ns_mov_b32 s58, 8\ns_cmp_eq_u32 s2, {DBGW+168}\ns_cselect_b32 s58, 36, s58\ns_cselect_b32 s59, {DBGW}, s2\ns_cmp_lg_u32 s59, {DBGW}\ns_cbranch_scc1 {lab}")
        k.e("v_readlane_b32 s56, v0, 0")
        for n,i in enumerate([1,2,3,4,29,5,9]):
            k.e(f"v_readlane_b32 s57, v0, {i}\ns_nop 3\ns_sub_u32 s57, s57, s56\nv_writelane_b32 v3, s57, {n}")
        srd(k, SDBG, 32, 33, 256)
        k.e(f"v_lshlrev_b32 v2, 2, v1\ns_mov_b64 exec, 0x7f\nbuffer_store_dword v3, v2, s[{SDBG}:{SDBG+3}], s58 offen\n{lab}:")
        return
    lab=k.lab("so")
    k.e(f"s_cmp_lg_u32 s{S_W}, {STW}\ns_cbranch_scc1 {lab}\ns_lshl_b32 s56, s2, 8\ns_add_u32 s56, s56, {STAMP_OFF}\nv_lshlrev_b32 v2, 2, v1")
    k.e(f"buffer_store_dword v0, v2, s[{SWS}:{SWS+3}], s56 offen\n{lab}:")

def allsum(k, v, t):
    for mod in ["quad_perm:[1,0,3,2]","quad_perm:[2,3,0,1]","row_half_mirror","row_mirror"]:
        k.e(f"s_nop 1\nv_add_f32_dpp v{v}, v{v}, v{v} {mod} row_mask:0xf bank_mask:0xf")
    for sw in ["v_permlane16_swap_b32","v_permlane32_swap_b32"]:
        k.e(f"v_mov_b32 v{t}, v{v}\ns_nop 1\n{sw} v{v}, v{t}\ns_nop 1\nv_add_f32 v{v}, v{v}, v{t}")
def rbf16(k, v): k.e(f"v_cvt_pk_bf16_f32 v{v}, v{v}, v{v}\nv_lshlrev_b32 v{v}, 16, v{v}")
def stats_compute(k, d, t):
    u=t+2
    for i in range(4): k.e(f"v_lshlrev_b32 v{u+2*i}, 16, v{d+i}\nv_and_b32 v{u+2*i+1}, 0xffff0000, v{d+i}")
    k.e(f"v_add_f32 v{t}, v{u}, v{u+1}\nv_add_f32 v{t+1}, v{u+2}, v{u+3}\nv_add_f32 v{d}, v{u+4}, v{u+5}\nv_add_f32 v{d+1}, v{u+6}, v{u+7}\nv_add_f32 v{t}, v{t}, v{t+1}\nv_add_f32 v{d}, v{d}, v{d+1}\nv_add_f32 v{t}, v{t}, v{d}")
    allsum(k, t, u+8)
    k.e(f"v_mul_f32 v{t}, {hex(f2u(1.0/448))}, v{t}\nv_cmp_gt_u32 vcc, 56, v1")
    for i in range(8): k.e(f"v_sub_f32 v{u+i}, v{u+i}, v{t}")
    k.e(f"v_mul_f32 v{t+1}, v{u}, v{u}\nv_mul_f32 v{d}, v{u+1}, v{u+1}")
    for i in range(2,8,2): k.e(f"v_fmac_f32 v{t+1}, v{u+i}, v{u+i}\nv_fmac_f32 v{d}, v{u+i+1}, v{u+i+1}")
    k.e(f"v_add_f32 v{t+1}, v{t+1}, v{d}\nv_cndmask_b32 v{t+1}, 0, v{t+1}, vcc")
    allsum(k, t+1, u+8)
    k.e(f"v_mul_f32 v{t+1}, {hex(f2u(1.0/448))}, v{t+1}")
    rbf16(k, t); rbf16(k, t+1)
    k.e(f"v_add_f32 v{t+1}, {hex(f2u(1e-5))}, v{t+1}")
    rbf16(k, t+1)
    k.e(f"v_sqrt_f32 v{t+1}, v{t+1}\ns_nop 0")
    rbf16(k, t+1)

def st_row_load(k, vq):
    D=ZST
    k.e(f"s_mov_b32 exec_hi, 0x00ffffff\nbuffer_load_dwordx4 v[{D}:{D+3}], v{D+4}, s[{SX}:{SX+3}], s61 offen\ns_mov_b32 exec_hi, -1"); vq.issue(("ROW",))
def st_nonce_load(k, vq):
    k.e(f"v_mov_b32 v{G4+2}, 0\nbuffer_load_dwordx2 v[{G4}:{G4+1}], v{G4+2}, s[{SDBG}:{SDBG+3}], 0 offen sc0 sc1"); vq.issue(("NON",))
def st_publish(k, vq):
    D=ZST; a=k.lab("nok"); b=k.lab("nsp")
    vwait(k, vq, lambda t: t==("NON",))
    k.e(f"""
    v_readfirstlane_b32 s{S_NON}, v{G4}
    v_readfirstlane_b32 s{S_NON+1}, v{G4+1}
    s_cmp_lg_u32 s{S_NON}, 0
    s_cbranch_scc1 {a}
    s_mov_b32 s57, 0
    {b}:
    s_sleep 2
    buffer_load_dwordx2 v[{G4}:{G4+1}], v{G4+2}, s[{SDBG}:{SDBG+3}], 0 offen sc0 sc1
    s_add_u32 s57, s57, 1
    s_waitcnt vmcnt(0)
    v_readfirstlane_b32 s{S_NON}, v{G4}
    v_readfirstlane_b32 s{S_NON+1}, v{G4+1}
    s_cmp_lg_u32 s{S_NON}, 0
    s_cbranch_scc1 {a}
    s_cmp_lt_u32 s57, {SPIN}
    s_cbranch_scc1 {b}
    {a}:
    s_lshl_b32 s56, s2, 3
    s_add_u32 s56, s56, s{S_W}
    s_lshl_b32 s56, s56, 4
    s_add_u32 s56, s56, {STATS_OFF}
    v_mov_b32 v{D+6}, s{S_NON}
    v_mov_b32 v{D+7}, s{S_NON+1}
    s_mov_b64 exec, 1
    buffer_store_dwordx4 v[{D+4}:{D+7}], v{G4+2}, s[{SWS}:{SWS+3}], s56 offen sc0 sc1
    s_mov_b64 exec, -1
    """); vq.issue(("PUB",))
def st_gran_load(k, vq):
    k.e(f"buffer_load_dwordx4 v[{G4}:{G4+3}], v{VGA}, s[{SWS}:{SWS+3}], 0 offen sc0 sc1"); vq.issue(("GR",))
def st_gran_check(k, vq):
    a=k.lab("gok"); b=k.lab("gsp")
    vwait(k, vq, lambda t: t==("GR",))
    k.e(f"""
    v_cmp_ne_u64 vcc, s[{S_NON}:{S_NON+1}], v[{G4+2}:{G4+3}]
    s_and_b64 vcc, vcc, s[84:85]
    s_cbranch_scc0 {a}
    s_mov_b32 s57, 0
    {b}:
    s_sleep 2
    buffer_load_dwordx4 v[{G4}:{G4+3}], v{VGA}, s[{SWS}:{SWS+3}], 0 offen sc0 sc1
    s_add_u32 s57, s57, 1
    s_waitcnt vmcnt(0)
    v_cmp_ne_u64 vcc, s[{S_NON}:{S_NON+1}], v[{G4+2}:{G4+3}]
    s_and_b64 vcc, vcc, s[84:85]
    s_cbranch_scc0 {a}
    s_cmp_lt_u32 s57, {SPIN}
    s_cbranch_scc1 {b}
    {a}:
    """)

def rot_setup(k, a, b, on):
    if not on: k.e("s_mov_b32 s3, -1"); return
    k.e(f"""
    s_add_u32 s3, s{a}, s{b}
    s_mul_i32 s10, s3, 86
    s_lshr_b32 s10, s10, 8
    s_mul_i32 s10, s10, 3
    s_sub_u32 s3, s3, s10
    s_lshl_b32 s10, s3, 1
    s_cmp_eq_u32 s3, 2
    s_cselect_b32 s3, 5, s10
    s_sub_u32 s3, s3, 1
    """)
def x_read_addr(k, d0, d1, t):
    k.e(f"""
    v_and_b32 v{t}, 15, v1
    v_lshrrev_b32 v{t+1}, 4, v1
    v_lshrrev_b32 v{t+2}, 1, v{t}
    v_xor_b32 v{t+3}, v{t+1}, v{t+2}
    v_xor_b32 v{t+4}, 4, v{t+3}
    v_lshlrev_b32 v{t+2}, 7, v{t}
    v_lshl_add_u32 v{d0}, v{t+3}, 4, v{t+2}
    v_lshl_add_u32 v{d1}, v{t+4}, 4, v{t+2}
    """)

def touch1(k, vq):
    if not T1: return
    tab=[(28,49,1792*896),(20,13,448*896)]
    if T1>=2: tab+=[(24,49,448*3584),(26,49,448*3584),(18,37,448*2688),(16,56,XB)]
    lab=k.lab("t1")
    k.e(f"s_mov_b32 s58, 0\ns_mov_b32 s{SMIX+3}, 0x20000\ns_mov_b32 s{SMIX}, s28\ns_mov_b32 s{SMIX+1}, s29\ns_mov_b32 s{SMIX+2}, 0")
    for w,(p,n,sz) in enumerate(tab):
        k.e(f"s_cmp_eq_u32 s{S_W}, {7-w}\ns_cselect_b32 s{SMIX}, s{p}, s{SMIX}\ns_cselect_b32 s{SMIX+1}, s{p+1}, s{SMIX+1}\ns_cselect_b32 s{SMIX+2}, {sz}, s{SMIX+2}\ns_cselect_b32 s58, {n}, s58")
    k.e(f"""
    s_mul_i32 s59, s58, s2
    s_lshl_b32 s59, s59, 7
    v_cmp_gt_u32 vcc, s58, v1
    v_lshlrev_b32 v{VDUM}, 7, v1
    v_mov_b32 v16, {OOB}
    v_cndmask_b32 v16, v16, v{VDUM}, vcc
    buffer_load_dword v{VDUM}, v16, s[{SMIX}:{SMIX+3}], s59 offen
    """); vq.issue(("T1",))

def w2_setup(k, t, cls):
    k.e(f"""
    v_lshrrev_b32 v{t}, 3, v1
    v_and_b32 v{t+1}, 7, v1
    v_lshrrev_b32 v{t+2}, 4, v1
    v_lshlrev_b32 v{t+3}, 1, v{t+2}
    v_xor_b32 v{t+1}, v{t+1}, v{t+3}
    v_mul_u32_u24 v{VH}, 896, v{t}
    v_lshl_add_u32 v{VH}, v{t+1}, 4, v{VH}
    s_lshl_b32 s56, s{S_CT}, 7
    v_add_u32 v{VH}, s56, v{VH}
    v_mov_b32 v{t+1}, {OOB}
    v_cmp_gt_u32 vcc, 4, v{t}
    s_mul_i32 s78, s{S_W}, {7*32*896}
    s_mul_i32 s79, s{S_W}, {2*28*896}
    v_cndmask_b32 v{VO}, v{t+1}, v{VH}, vcc
    v_bfe_u32 v{t}, v1, 2, 2
    v_lshl_add_u32 v{t}, v{t+2}, 2, v{t}
    v_bfe_u32 v{t+1}, v{t}, 1, 2
    v_lshlrev_b32 v{t}, 7, v{t}
    v_and_b32 v{t+2}, 3, v1
    v_lshl_add_u32 v{t}, v{t+2}, 3, v{t}
    v_lshl_add_u32 v{VT}, v{t+1}, 5, v{t}
    s_lshl_b32 s56, s{S_W}, 12
    v_add_u32 v{VT}, s56, v{VT}
    """)
    if ROT2: k.e(f"s_lshl_b32 s{S_ROT}, s{cls}, 1\ns_add_u32 s{S_ROT}, s{S_ROT}, s{S_CT}\ns_sub_u32 s56, s{S_ROT}, 7\ns_cmp_ge_u32 s{S_ROT}, 7\ns_cselect_b32 s{S_ROT}, s56, s{S_ROT}")
    else: k.e(f"s_mov_b32 s{S_ROT}, 0")
    k.e(f"s_sub_u32 s77, s{S_ROT}, 1")
def area_base(k, sd, lo, hi):
    k.e(f"s_mov_b32 s{sd}, {lo}\ns_cmp_ge_u32 s{S_W}, 4\ns_cselect_b32 s{sd}, {hi-16384}, s{sd}")
def w2_dma(k, vq, i, base, sd, so):
    def one(q):
        pre=""
        if q==0:
            if i<7: pre=f"s_add_u32 s77, s77, 1\ns_cmp_eq_u32 s77, 7\ns_cselect_b32 s77, 0, s77\ns_mul_i32 s67, s77, {32*896}\ns_add_u32 s67, s67, s78\n"
            else:   pre=f"s_add_u32 s67, s79, {28*(i-7)*896}\n"
            pre+=f"s_lshl_b32 s9, s{S_W}, 12\ns_add_u32 s9, s9, {base}\n"
        v=VO if (i>=7 and q==3) else VH; srdn=sd if i<7 else so
        k.e(f"{pre}s_add_u32 m0, s9, {q*1024}\ns_add_u32 s56, s67, {q*8*896}\nbuffer_load_dwordx4 v{v}, s[{srdn}:{srdn+3}], s56 offen lds")
        vq.issue(("W2",i))
    return [ (lambda q=q: one(q)) for q in range(4)]
def w2_tr(k, vq, i, base, tmp, Z):
    vwait(k, vq, lambda t: t==("W2",i), "lgkmcnt(7)")
    k.e(f"v_add_u32 v{tmp}, {base}, v{VT}")
    for T in range(1,4): k.e(f"v_xor_b32 v{tmp+T}, {T*32}, v{tmp}")
    for T in range(4):
        for h in range(2): k.e(f"ds_read_b64_tr_b16 v[{Z+4*T+2*h}:{Z+4*T+2*h+1}], v{tmp+T} offset:{h*2048}")

def p2_addr(k, nm, t):
    k.e(f"s_mul_i32 s56, s{S_PJ}, 11")
    for i in range(4): k.e(f"s_add_u32 s{S_T0+i}, s56, s{92+i}\ns_mul_i32 s{S_T0+i}, s{S_T0+i}, {A2_VT}")
    k.e(f"""
    v_and_b32 v{t}, 15, v1
    v_min_u32 v{VPA}, 13, v{t}
    v_lshlrev_b32 v{VPA}, 3, v{VPA}
    s_lshl_b32 s56, s{S_PJ}, 7
    s_add_u32 s56, s56, {FLAG_OFF}
    v_add_u32 v{VPA}, s56, v{VPA}
    s_mul_i32 s56, s{S_PJ}, 174
    s_mul_i32 s57, s56, 342
    s_lshr_b32 s57, s57, 16
    s_add_u32 s58, s56, 173
    s_min_u32 s58, s58, 2047
    s_mul_i32 s58, s58, 342
    s_lshr_b32 s58, s58, 16
    s_cmp_lg_u32 s58, s57
    s_cselect_b32 s58, 15, 7
    v_min_u32 v{t}, s58, v{t}
    s_lshl_b32 s58, s57, 6
    s_add_u32 s58, s58, {AFLAG_OFF}
    v_lshl_add_u32 v{t}, v{t}, 3, s58
    v_cmp_lt_u32 vcc, 15, v1
    s_lshr_b32 s58, s{S_W}, 1
    s_and_b32 s59, s{S_W}, 1
    v_cndmask_b32 v{VPA}, v{VPA}, v{t}, vcc
    s_lshl_b32 s59, s59, 3
    s_cmp_eq_u32 s58, 1
    s_cselect_b32 s60, s93, s92
    s_cmp_eq_u32 s58, 2
    s_cselect_b32 s60, s94, s60
    s_cmp_eq_u32 s58, 3
    s_cselect_b32 s60, s95, s60
    s_lshl_b32 s60, s60, 4
    s_add_u32 s60, s60, s59
    v_lshrrev_b32 v{VOA}, 3, v1
    v_add_u32 v{VOA}, s60, v{VOA}
    v_cmp_lt_u32 vcc, 95, v{VOA}
    v_cmp_ne_u32 s[60:61], 0, v{VOA}
    s_movk_i32 s59, 96
    v_cmp_ne_u32 s[86:87], s59, v{VOA}
    v_subbrev_co_u32 v{VOA}, vcc, 1, v{VOA}, vcc
    s_and_b64 s[60:61], s[60:61], s[86:87]
    v_add_u32 v{VOA}, s56, v{VOA}
    s_cmp_lt_u32 s58, {nm}
    s_cselect_b64 s[86:87], -1, 0
    s_and_b64 s[60:61], s[60:61], s[86:87]
    v_mul_u32_u24 v{VOA}, 896, v{VOA}
    v_and_b32 v{t}, 7, v1
    v_lshl_add_u32 v{VOA}, v{t}, 4, v{VOA}
    s_lshl_b32 s56, s{S_CT}, 7
    v_add_u32 v{VOA}, s56, v{VOA}
    v_mov_b32 v{t}, {OOB}
    v_cndmask_b32 v{VOA}, v{t}, v{VOA}, s[60:61]
    """)

def flag_store(k, soff):
    k.e(f"""
    v_mov_b32 v2, s{S_NON}
    v_mov_b32 v3, s{S_NON+1}
    v_mov_b32 v4, 0
    s_mov_b64 exec, 1
    buffer_store_dwordx2 v[2:3], v4, s[{SWS}:{SWS+3}], s{soff} offen sc0 sc1
    s_mov_b64 exec, -1
    """)

def gen_P2(k, vq, nm, WF, fin, ACC, RING, otag, soff):
    PV=2; AV=5; OA=6; PA=7; WA=8
    vwait(k, vq, lambda t: t==otag)
    k.e("s_barrier")
    stamp(k,4)
    l1=k.lab("w0")
    k.e(f"v_mov_b32 v{OA}, v{VOA}\nv_mov_b32 v{PA}, v{VPA}\ns_cmp_lg_u32 s{S_W}, 0\ns_cbranch_scc1 {l1}")
    flag_store(k, soff)
    k.e(f"{l1}:")
    k.e(f"buffer_load_dwordx4 v[{G4}:{G4+3}], v{OA}, s[{SX}:{SX+3}], 0 offen"); vq.issue(("XR",))
    fin()
    stamp(k,29)
    a=k.lab("pok"); b=k.lab("psp")
    k.e(f"""
    s_cmp_lg_u32 s{S_W}, 0
    s_cbranch_scc1 {a}
    s_mov_b32 s57, 0
    s_mov_b32 exec_hi, 0
    {b}:
    buffer_load_dwordx2 v[{PV}:{PV+1}], v{PA}, s[{SWS}:{SWS+3}], 0 offen sc0 sc1
    s_add_u32 s57, s57, 1
    s_waitcnt vmcnt(0)
    v_cmp_ne_u64 vcc, s[{S_NON}:{S_NON+1}], v[{PV}:{PV+1}]
    s_cmp_eq_u64 vcc, 0
    s_cbranch_scc1 {a}
    s_sleep 4
    s_cmp_lt_u32 s57, {SPIN}
    s_cbranch_scc1 {b}
    {a}:
    s_mov_b32 exec_hi, -1
    v_lshlrev_b32 v{AV}, 4, v1
    s_mul_i32 s64, s{S_W}, 7168
    s_add_u32 s66, s64, 7168
    s_lshl_b32 s65, s{S_ROT}, 10
    s_add_u32 s65, s65, s64
    s_sub_u32 s65, s65, 1024
    s_lshl_b32 s63, s{S_W}, 11
    s_add_u32 s63, s63, {56*1024}
    s_waitcnt lgkmcnt(0)
    s_barrier
    """)
    stamp(k,5)
    seq=[(m,i) for i in range(7) for m in range(nm)]+[(m,i) for m in range(nm) for i in (7,8)]
    NR=len(RING)
    def ld(c):
        m,i=seq[c]; b=RING[c%NR]
        if i<7:
            if m==0: k.e("s_add_u32 s65, s65, 1024\ns_cmp_eq_u32 s65, s66\ns_cselect_b32 s65, s64, s65")
            k.e(f"s_add_u32 s56, s{S_T0+m}, s65\nbuffer_load_dwordx4 v[{b}:{b+3}], v{AV}, s[{SWS}:{SWS+3}], s56 offen {LDF}")
        else:
            k.e(f"s_add_u32 s56, s{S_T0+m}, s63\nbuffer_load_dwordx4 v[{b}:{b+3}], v{AV}, s[{SWS}:{SWS+3}], s56 offen offset:{(i-7)*1024} {LDF}")
        vq.issue(("A",c))
    nxt=0
    while nxt<NR: ld(nxt); nxt+=1
    k.e(f"""
    v_and_b32 v{WA}, 15, v1
    v_lshrrev_b32 v{WA+1}, 4, v1
    v_and_b32 v{WA+2}, 2, v{WA+1}
    v_xor_b32 v{WA}, v{WA}, v{WA+2}
    v_lshlrev_b32 v{WA}, 4, v{WA}
    v_lshl_add_u32 v{WA}, v{WA+1}, 8, v{WA}
    s_lshl_b32 s56, s{S_W}, 14
    v_add_u32 v{WA}, s56, v{WA}
    v_xor_b32 v{WA+1}, 64, v{WA}
    v_xor_b32 v{WA+2}, 0x80, v{WA}
    v_xor_b32 v{WA+3}, 0xc0, v{WA}
    s_lshr_b32 s58, s{S_W}, 1
    s_and_b32 s59, s{S_W}, 1
    s_lshl_b32 s59, s59, 3
    v_lshrrev_b32 v{PV}, 3, v1
    v_add_u32 v{PV}, s59, v{PV}
    v_and_b32 v{PV+1}, 7, v1
    v_lshlrev_b32 v{PA}, 1, v{PV+1}
    v_xor_b32 v{PV}, v{PV}, v{PA}
    v_lshlrev_b32 v{PV+1}, 9, v{PV+1}
    v_lshl_add_u32 v{PV}, v{PV}, 4, v{PV+1}
    s_lshl_b32 s56, s58, 12
    v_add_u32 v{PV}, s56, v{PV}
    v_add_u32 v{PV+1}, 0x10000, v{PV}
    """)
    srd(k, SMIX, 30, 31, XB)
    def wr(m):
        for T in range(4): k.e(f"ds_write_b128 v{WA+T}, v[{ACC+m*16+T*4}:{ACC+m*16+T*4+3}] offset:{m*4096+T*1024}")
    for c,(m,i) in enumerate(seq):
        vwait(k, vq, lambda t: t==("A",c))
        b=RING[c%NR]
        for T in range(4):
            a=ACC+m*16+T*4; w=WF[i]+T*4
            cc="0" if i==0 else f"v[{a}:{a+3}]"
            k.e(f"v_mfma_f32_16x16x32_bf16 v[{a}:{a+3}], v[{w}:{w+3}], v[{b}:{b+3}], {cc}")
        if nxt<len(seq): ld(nxt); nxt+=1
        if c==nm*7-1: stamp(k,7)
        if i==8 and m>0: wr(m-1)
    O=WF[4]
    for c in range(8):
        k.e(f"v_lshlrev_b32 v{O+c}, 16, v{G4+c//2}" if c%2==0 else f"v_and_b32 v{O+c}, 0xffff0000, v{G4+c//2}")
    wr(nm-1)
    k.e("s_waitcnt lgkmcnt(0)\ns_barrier")
    stamp(k,8)
    rr=lambda sw: WF[sw//2]+(sw%2)*8
    for sw in range(8):
        if sw==7: k.e("s_waitcnt lgkmcnt(12)")
        for e in range(2): k.e(f"ds_read_b128 v[{rr(sw)+4*e}:{rr(sw)+4*e+3}], v{PV+(sw>>2)} offset:{(sw&3)*16384+e*256}")
    for sw in range(8):
        k.e(f"s_waitcnt lgkmcnt({14-2*sw})")
        for j in range(8): k.e(f"v_add_f32 v{O+j}, v{O+j}, v{rr(sw)+j}")
    P=O+8
    for j in range(4): k.e(f"v_cvt_pk_bf16_f32 v{P+j}, v{O+2*j}, v{O+2*j+1}")
    k.e(f"buffer_store_dwordx4 v[{P}:{P+3}], v{OA}, s[{SMIX}:{SMIX+3}], 0 offen")
    stamp(k,9); stamp_out(k)

def emit_kstep(k, M, R, now, prio_pos, prio_len, rd2=0):
    i=0; nM=len(M); nD=len(now); done=0; q=prio_len//4
    for mi,m in enumerate(M):
        pos=prio_pos+mi
        if PRIO and pos%q==0 and pos//q<4: k.e(f"s_setprio {3-pos//q}")
        k.e(m)
        for _ in range(2 if mi<rd2 else 1):
            if i<len(R):
                if i==13: k.e("s_waitcnt lgkmcnt(8)")
                k.e(R[i]); i+=1
        while now and done<(mi+1)*nD//nM: now.pop(0)(); done+=1
    assert i==len(R) and not now

WSLOT=16384; NWS=5; XBASE=NWS*WSLOT; XSLOT=22528; NXS=3
F_STAT=XBASE+NXS*XSLOT; F_DUMMY=F_STAT+3072
assert F_DUMMY+1024<=LDS_BYTES
ACC=16; AF=[112,136]; BF=[160,176]; Z=[192,208,224,240]
F_AREA={0:"s7",1:0,2:"s8",3:"s10",4:"s7",5:0,6:"s8",7:"s10",8:"s7"}
F_ZI=[Z[0],Z[1],112,128,144,160,176,Z[2],Z[3]]
def gen_F(k):
    k.e(f"""
    s_mul_i32 s60, s57, 37
    s_lshr_b32 s60, s60, 8
    s_mul_i32 s63, s60, 7
    s_sub_u32 s{S_CT}, s57, s63
    s_mul_i32 s{S_J}, s58, 3
    s_add_u32 s{S_J}, s{S_J}, s60
    s_mul_i32 s{S_CG}, s59, 7
    s_add_u32 s{S_CG}, s{S_CG}, s{S_CT}
    s_mul_i32 s{S_PJ}, s56, 3
    s_add_u32 s{S_PJ}, s{S_PJ}, s60
    s_mov_b32 s77, s60
    s_lshl_b32 s91, s57, 3
    s_add_u32 s91, s91, s{S_W}
    v_lshrrev_b32 v4, 4, v1
    s_lshl_b32 s60, s{S_W}, 2
    v_add_u32 v4, s60, v4
    v_and_b32 v5, 3, v4
    v_bfe_u32 v6, v4, 3, 1
    v_lshl_or_b32 v5, v6, 2, v5
    v_lshlrev_b32 v5, 1, v5
    v_and_b32 v6, 15, v1
    v_xor_b32 v5, v5, v6
    v_lshlrev_b32 v5, 4, v5
    v_mul_u32_u24 v2, 3584, v4
    v_add_u32 v2, v2, v5
    s_lshl_b32 s60, s{S_CG}, 8
    v_add_u32 v2, s60, v2
    v_lshrrev_b32 v6, 3, v1
    v_and_b32 v7, 7, v1
    v_lshrrev_b32 v8, 4, v1
    s_and_b32 s60, s{S_W}, 1
    s_lshl_b32 s60, s60, 2
    v_xor_b32 v7, v7, v8
    v_xor_b32 v7, s60, v7
    s_mul_i32 s62, s{S_J}, 174
    s_lshl_b32 s60, s{S_W}, 3
    s_add_u32 s60, s60, s62
    s_sub_u32 s60, s60, 1
    s_mul_i32 s60, s60, 896
    v_mul_u32_u24 v4, 896, v6
    v_lshl_add_u32 v4, v7, 4, v4
    v_add_u32 v4, s60, v4
    v_add_u32 v5, {63*896}, v4
    s_mov_b64 s[80:81], -1
    s_mov_b64 s[82:83], -1
    s_cmp_eq_u32 s{S_W}, 0
    s_cselect_b32 s80, 0xffffff00, s80
    s_cmp_eq_u32 s{S_W}, 4
    s_cselect_b32 s82, 0xffffff00, s82
    s_cmp_lt_u32 s{S_W}, 4
    s_cselect_b32 s63, 896, 0
    s_add_u32 s65, s{S_W1K}, {XBASE+16384}
    s_mov_b32 s64, {64*896}
    s_cmp_ge_u32 s{S_W}, 6
    s_cselect_b32 s64, 0x40000000, s64
    s_cselect_b32 s65, {F_DUMMY}, s65
    s_cselect_b32 s66, 0, {XSLOT}
    """)
    rot_setup(k, S_J, S_CG, ROT_F)
    k.e("s_waitcnt lgkmcnt(0)")
    srd(k, SX, 16, 17, XB); srd(k, SWA, 24, 25, 448*3584); srd(k, SWB, 26, 27, 448*3584)
    vq=Q(); nis={}
    def dW(vq, ks, mat):
        sl=(ks%NWS)*WSLOT+mat*8192
        if ROT_F:
            if mat==0 and ks%2==0: k.e(f"s_add_u32 s3, s3, 1\ns_cmp_eq_u32 s3, 7\ns_cselect_b32 s3, 0, s3\ns_mul_i32 s11, s3, {64*3584}\ns_lshl_b32 s{4+(ks//2)%3}, s3, 7")
            so=f"s_add_u32 s56, s11, {(ks&1)*32*3584}"
        else: so=f"s_mov_b32 s56, {ks*32*3584}"
        k.e(f"s_add_u32 m0, s{S_W1K}, {sl}\n{so}\nbuffer_load_dwordx4 v2, s[{(SWA,SWB)[mat]}:{(SWA,SWB)[mat]+3}], s56 offen lds"); vq.issue(("W",ks)); vq.nis[("W",ks)]=vq.nis.get(("W",ks),0)+1
    def dX(vq, p, t):
        sl=XBASE+(p%NXS)*XSLOT; po=f"s{4+p%3}" if ROT_F else str(p*128)
        if t==0:   k.e(f"s_add_u32 m0, s{S_W1K}, {sl}\ns_mov_b32 s56, {po}\ns_mov_b64 exec, s[80:81]\nbuffer_load_dwordx4 v4, s[{SX}:{SX+3}], s56 offen lds\ns_mov_b64 exec, -1")
        elif t==1: k.e(f"s_add_u32 m0, s{S_W1K}, {sl+8192}\ns_add_u32 s56, s63, {po}\ns_mov_b64 exec, s[82:83]\nbuffer_load_dwordx4 v5, s[{SX}:{SX+3}], s56 offen lds\ns_mov_b64 exec, -1")
        else:      k.e(f"s_mul_i32 s56, s66, {p%NXS}\ns_add_u32 m0, s65, s56\ns_add_u32 s56, s64, {po}\nbuffer_load_dwordx4 v5, s[{SX}:{SX+3}], s56 offen lds")
        vq.issue(("X",p)); vq.nis[("X",p)]=vq.nis.get(("X",p),0)+1
    gW=lambda ks: [("W",ks,0),("W",ks,1)]
    gX=lambda p: [("X",p,0),("X",p,1),("X",p,2)]
    run=lambda vq,d: (dW if d[0]=="W" else dX)(vq,d[1],d[2])
    vq.nis={}
    allp=[gW(0)+gX(0), gW(1), gW(2)+gX(1), gW(3), gW(4)+gX(2)]
    st_row_load(k, vq)
    for d in allp[0]: run(vq,d)
    pend0=[d for g in allp[F_PRO:] for d in g]
    srd(k, SWS, 34, 35, WS_BYTES); srd(k, SDBG, 32, 33, 256)
    lab=k.lab("nn")
    k.e(f"""
    s_or_b32 s56, s2, s{S_W}
    s_cmp_lg_u32 s56, 0
    s_cbranch_scc1 {lab}
    s_memrealtime s[58:59]
    s_waitcnt lgkmcnt(0)
    s_or_b32 s58, s58, 1
    v_mov_b32 v12, s58
    v_mov_b32 v13, s59
    v_mov_b32 v14, 0
    s_mov_b64 exec, 1
    buffer_store_dwordx2 v[12:13], v14, s[{SDBG}:{SDBG+3}], 0 offen sc0 sc1
    s_mov_b64 exec, -1
    {lab}:
    """)
    x_read_addr(k, 6, 7, 16)
    k.e(f"""
    s_lshr_b32 s56, s{S_W}, 2
    s_mul_i32 s56, s56, {6*2048}
    s_add_u32 s56, s56, {XBASE}
    v_add_u32 v6, s56, v6
    v_add_u32 v7, s56, v7
    v_lshrrev_b32 v18, 2, v16
    v_and_b32 v19, 3, v16
    v_and_b32 v20, 1, v17
    v_lshl_or_b32 v20, v20, 2, v18
    v_lshl_add_u32 v18, v17, 3, v18
    v_lshlrev_b32 v18, 8, v18
    v_lshl_add_u32 v18, v19, 3, v18
    s_and_b32 s56, s{S_W}, 3
    s_lshl_b32 s56, s56, 1
    v_xor_b32 v21, s56, v20
    v_xor_b32 v22, 1, v21
    v_lshl_add_u32 v8, v21, 5, v18
    v_lshl_add_u32 v9, v22, 5, v18
    v_add_u32 v10, 0xc000, v8
    v_add_u32 v11, 0xc000, v9
    v_lshrrev_b32 v16, 3, v1
    v_and_b32 v17, 1, v16
    v_lshrrev_b32 v16, 1, v16
    v_mul_u32_u24 v16, {XSLOT}, v16
    v_mul_u32_u24 v17, {96*128}, v17
    v_and_b32 v18, 7, v1
    v_lshlrev_b32 v18, 4, v18
    v_add3_u32 v16, v16, v17, v18
    v_add_u32 v16, {XBASE}, v16
    v_mov_b32 v20, 0x3f803f80
    v_mov_b32 v21, 0x3f803f80
    v_mov_b32 v22, 0x3f803f80
    v_mov_b32 v23, 0x3f803f80
    s_mov_b32 exec_hi, 0xffff
    ds_write_b128 v16, v[20:23]
    s_mov_b32 exec_hi, -1
    s_bitcmp1_b32 s{S_PJ}, 0
    s_cselect_b32 s92, 6, 0
    s_cselect_b32 s93, 3, 1
    s_cselect_b32 s94, 8, 2
    s_cselect_b32 s95, 5, 4
    s_lshr_b32 s{S_PJ}, s{S_PJ}, 1
    s_lshl_b32 s56, s{S_W}, 6
    v_add_u32 v{VGL}, s56, v1
    v_cmp_lt_u32 vcc, 95, v{VGL}
    v_cmp_ne_u32 s[58:59], 0, v{VGL}
    s_movk_i32 s56, 96
    v_cmp_ne_u32 s[60:61], s56, v{VGL}
    v_subbrev_co_u32 v{VGA}, vcc, 1, v{VGL}, vcc
    s_and_b64 s[58:59], s[58:59], s[60:61]
    v_cmp_gt_u32 vcc, 176, v{VGL}
    v_add_u32 v{VGA}, s62, v{VGA}
    s_and_b64 s[58:59], s[58:59], vcc
    s_movk_i32 s56, 2048
    v_cmp_gt_u32 s[60:61], s56, v{VGA}
    v_lshlrev_b32 v{VGA}, 4, v{VGA}
    v_add_u32 v{VGA}, {STATS_OFF}, v{VGA}
    s_and_b64 s[84:85], s[58:59], s[60:61]
    v_lshlrev_b32 v{VGL}, 4, v{VGL}
    v_add_u32 v{VGL}, {F_STAT}, v{VGL}
    v_lshlrev_b32 v16, 4, v1
    v_add_u32 v16, {F_DUMMY}, v16
    v_cndmask_b32 v{VGL}, v16, v{VGL}, vcc
    """)
    w2_setup(k, 16, 77)
    p2_addr(k, 4, 16)
    area_base(k, 7, 65536, 104448); area_base(k, 8, 32768, 120832); area_base(k, 10, 49152, 81920)
    for d in allp[1]: run(vq,d)
    touch1(k, vq)
    srd(k, SMIX, 28, 29, 1792*896)
    vwait(k, vq, lambda t: t==("ROW",))
    stats_compute(k, ZST, ZST+4)
    for g in allp[2:F_PRO]:
        for d in g: run(vq,d)
    vwait(k, vq, lambda t: t in (("W",0),("X",0)), "lgkmcnt(0)")
    k.e("s_barrier")
    stamp(k,1)
    def body(NM, hf):
        import copy
        vq_=Q(); vq_.q=list(vq.q); vq_.nis=dict(vq.nis); pend=list(pend0)
        return body2(NM,hf,vq_,pend)
    def body2(NM, hf, vq, pend):
        D_=lambda i: w2_dma(k,vq,i,F_AREA[i],SMIX,SWA)
        TR=lambda i: w2_tr(k,vq,i,F_AREA[i],TT,F_ZI[i])
        def reads(ks):
            L=[]; P=ks&1; slot=ks%NWS
            wb=(8,9) if slot<3 else (10,11); so=(slot if slot<3 else slot-3)*WSLOT; xs=(ks>>1)%NXS
            xr=lambda m: L.append(f"ds_read_b128 v[{AF[P]+m*4}:{AF[P]+m*4+3}], v{6+(ks&1)} offset:{xs*XSLOT+m*2048}")
            xr(0)
            for mat in range(2):
                for T in range(2):
                    b=BF[P]+(mat*2+T)*4
                    for h in range(2): L.append(f"ds_read_b64_tr_b16 v[{b+2*h}:{b+2*h+1}], v{wb[T]} offset:{so+mat*8192+h*1024}")
            for m in range(1,NM): xr(m)
            return L
        def mfmas(ks):
            P=ks&1; L=[]
            for m in range(NM):
                for n in range(4):
                    a=ACC+(m*4+n)*4; c="0" if ks==0 else f"v[{a}:{a+3}]"
                    L.append(f"v_mfma_f32_16x16x32_bf16 v[{a}:{a+3}], v[{BF[P]+n*4}:{BF[P]+n*4+3}], v[{AF[P]+m*4}:{AF[P]+m*4+3}], {c}")
            return L
        for r in reads(0): k.e(r)
        for ks in range(14):
            if ks<13: assert vq.nis.get(("W",ks+1))==2 and vq.nis.get(("X",(ks+1)>>1))==3, ks
            vwait(k, vq, lambda t: (t[0]=="W" and t[1]<=ks+1) or (t[0]=="X" and t[1]<=(ks+1)>>1), "lgkmcnt(0)")
            k.e("s_barrier")
            if KST: stamp(k,10+ks)
            if ks+5<14: pend+=gW(ks+5)
            if ks&1 and (ks>>1)+3<7: pend+=gX((ks>>1)+3)
            now=[(lambda d=d: run(vq,d)) for d in pend[:F_BUD]]; del pend[:F_BUD]
            if ks==0: now.append(lambda: st_nonce_load(k,vq))
            if ks==3: now.insert(0,lambda: st_publish(k,vq))
            if ks==T2KS:
                def t2():
                    k.e(f"""
                    v_lshlrev_b32 v{G4}, 7, v1
                    v_mov_b32 v{G4+1}, {OOB}
                    v_cmp_gt_u32 vcc, 11, v1
                    s_mul_i32 s56, s91, {75*128}
                    buffer_load_dword v{VDUM}, v{G4}, s[{SMIX}:{SMIX+3}], s56 offen
                    v_cndmask_b32 v{G4+2}, v{G4+1}, v{G4}, vcc
                    v_cmp_gt_u32 vcc, 19, v1
                    s_add_u32 s56, s56, 8192
                    buffer_load_dword v{VDUM}, v{G4+2}, s[{SMIX}:{SMIX+3}], s56 offen
                    v_cndmask_b32 v{G4+2}, v{G4+1}, v{G4}, vcc
                    s_mov_b32 s{SDBG}, s20
                    s_mov_b32 s{SDBG+1}, s21
                    s_mov_b32 s{SDBG+2}, {448*896}
                    s_mul_i32 s56, s91, {19*128}
                    buffer_load_dword v{VDUM}, v{G4+2}, s[{SDBG}:{SDBG+3}], s56 offen
                    """)
                    for _ in range(3): vq.issue(("T2",))
                now.append(t2)
            if ks==9: now.append(lambda: st_gran_load(k,vq))
            if ks==11:
                def gc():
                    st_gran_check(k, vq)
                    k.e(f"""
                    v_rcp_f32 v{G4+2}, v{G4+1}
                    v_mul_f32 v{G4+3}, v{G4+1}, v{G4+1}
                    v_sub_f32 v{G4}, 0, v{G4}
                    v_mul_f32 v{G4+1}, {hex(f2u(C0))}, v{G4+2}
                    v_mul_f32 v{VGA}, v{G4+2}, v{G4+2}
                    v_mul_f32 v{G4+2}, v{G4+2}, v{VGA}
                    v_mul_f32 v{G4+2}, {hex(f2u(C1))}, v{G4+2}
                    ds_write_b128 v{VGL}, v[{G4}:{G4+3}]
                    """)
                now.append(gc)
            if ks>=10: now=D_(ks-10)+now
            emit_kstep(k, mfmas(ks), reads(ks+1) if ks<13 else [], now, 0, NM*4)
        assert not pend
        stamp(k,2)
        CS=Z[2]
        k.e("s_setprio 0" if hf==0 else "s_setprio 1")
        srd(k, SWA, 20, 21, 448*896)
        k.e(f"""
        v_and_b32 v4, 15, v1
        v_lshlrev_b32 v4, 4, v4
        v_add_u32 v4, {F_STAT+hf*96*16}, v4
        ds_read_b128 v[{G4}:{G4+3}], v4
        v_lshlrev_b32 v5, 4, v1
        s_mul_i32 s62, s{S_J}, {11*A2_VT}
        s_lshl_b32 s63, s{S_CG}, 2
        s_and_b32 s56, s{S_W}, 3
        s_add_u32 s63, s63, s56
        s_lshl_b32 s63, s63, 10
        s_add_u32 s62, s62, s63
        s_add_u32 s62, s62, {hf*6*A2_VT}
        s_lshl_b32 s63, s{S_J}, 7
        s_lshl_b32 s56, s{S_CG}, 3
        s_add_u32 s63, s63, s56
        s_add_u32 s63, s63, {FLAG_OFF}
        """)
        for r in range(16): k.e(f"v_mov_b32_dpp v{CS+r}, v{ACC+r} row_newbcast:0 row_mask:0xf bank_mask:0xf")
        def tile(m, side):
            a=ACC+m*16; st=G4; T=[2,6,8,10]
            P=lambda x: f"v[{x}:{x+1}]"
            K0=176; S2=178
            L=["s_waitcnt lgkmcnt(0)", f"v_mov_b32 v{K0}, v{st+1}", f"v_mov_b32 v{S2}, v{st+3}"]
            for r in range(4): L.append(f"v_pk_fma_f32 {P(a+2*r)}, {P(st)}, {P(CS+2*r)}, {P(a+2*r)} op_sel_hi:[0,1,1]")
            for r in range(4): L.append(f"v_pk_mul_f32 {P(T[r])}, {P(a+2*r)}, {P(a+2*r)}")
            for r in range(4): L.append(f"v_pk_fma_f32 {P(T[r])}, {P(T[r])}, {P(st+2)}, {P(K0)} op_sel_hi:[1,0,0]")
            for r in range(4): L.append(f"v_pk_mul_f32 {P(T[r])}, {P(T[r])}, {P(a+2*r)}")
            for r in range(4): L+= [f"v_exp_f32 v{T[r]}, v{T[r]}", f"v_exp_f32 v{T[r]+1}, v{T[r]+1}", f"v_pk_fma_f32 {P(a+8+2*r)}, {P(st)}, {P(CS+8+2*r)}, {P(a+8+2*r)} op_sel_hi:[0,1,1]"]
            for r in range(4): L.append(f"v_pk_fma_f32 {P(T[r])}, {P(T[r])}, {P(S2)}, {P(S2)} op_sel_hi:[1,0,0]")
            for r in range(4): L+= [f"v_rcp_f32 v{T[r]}, v{T[r]}", f"v_rcp_f32 v{T[r]+1}, v{T[r]+1}", f"v_pk_mul_f32 {P(a+2*r)}, {P(a+2*r)}, {P(a+8+2*r)}"]
            for r in range(4): L.append(f"v_pk_mul_f32 {P(a+2*r)}, {P(a+2*r)}, {P(T[r])}")
            if m+1<NM: L.append(f"ds_read_b128 v[{G4}:{G4+3}], v4 offset:{(m+1)*256}")
            for r in range(4): L.append(f"v_cvt_pk_bf16_f32 v{a+8+r}, v{a+2*r}, v{a+2*r+1}")
            for c,l in enumerate(L):
                k.e(l)
                if side and c%10==5: side.pop(0)()
            while side: side.pop(0)()
            k.e(f"s_add_u32 s56, s62, {m*A2_VT}\nbuffer_store_dwordx4 v[{a+8}:{a+11}], v5, s[{SWS}:{SWS+3}], s56 offen {STF}"); vq.issue(("H",))
        tile(0,[]); TR(0)
        for m in range(1,5):
            tile(m, D_(m+3)); TR(m)
            if m==1: stamp(k,24)
            if m==3: stamp(k,25)
        if NM==6: tile(5, D_(8))
        else:
            k.e("s_waitcnt lgkmcnt(0)")
            for f in D_(8): f()
        stamp(k,3)
        return vq
    k.e(f"s_cmp_ge_u32 s{S_W}, 4\ns_cbranch_scc1 kF_h1")
    vq0=body(6,0)
    k.e("s_branch kF_join\nkF_h1:")
    vq1=body(5,1)
    k.e("kF_join:\ns_setprio 0")
    vb=Both(vq0,vq1)
    def fin():
        for i in range(5,9): w2_tr(k,vb,i,F_AREA[i],8,F_ZI[i])
    gen_P2(k, vb, 4, F_ZI, fin, 16, [80+4*i for i in range(8)], ("H",), 63)
    k.e("s_endpgm")

SLOT=49152; A_STAT=3*SLOT; AWOFF=26*1024
A_ACC=16; A_H=88; A_XF=96; A_WF=128; XO=192
def gen_A(k):
    vq=Q(); S_RG=S_J; S_HP=S_CG
    k.e(f"""
    kA:
    s_mul_i32 s60, s58, 11
    s_add_u32 s60, s60, s57
    s_sub_u32 s60, s60, 21
    s_lshr_b32 s{S_RG}, s60, 2
    s_and_b32 s60, s60, 3
    s_lshl_b32 s{S_HP}, s59, 2
    s_add_u32 s{S_HP}, s{S_HP}, s60
    s_mul_i32 s62, s{S_RG}, 192
    s_mul_i32 s60, s56, 11
    s_add_u32 s60, s60, s57
    s_sub_u32 s60, s60, 21
    s_mul_i32 s{S_PJ}, s60, 293
    s_lshr_b32 s{S_PJ}, s{S_PJ}, 11
    s_mul_i32 s63, s{S_PJ}, 7
    s_sub_u32 s{S_CT}, s60, s63
    v_lshrrev_b32 v10, 3, v1
    v_and_b32 v11, 7, v1
    v_lshrrev_b32 v12, 4, v1
    s_and_b32 s60, s{S_W}, 1
    s_lshl_b32 s60, s60, 2
    v_xor_b32 v13, v11, v12
    v_xor_b32 v13, s60, v13
    s_lshl_b32 s60, s{S_W}, 3
    s_add_u32 s60, s60, s62
    s_sub_u32 s60, s60, 16
    v_add_u32 v10, s60, v10
    s_movk_i32 s63, 896
    v_mul_lo_u32 v4, v10, s63
    v_lshl_add_u32 v4, v13, 4, v4
    v_add_u32 v5, {64*896}, v4
    v_mov_b32 v14, {OOB}
    v_cmp_gt_i32 vcc, 0, v10
    s_mov_b64 s[80:81], -1
    s_cmp_eq_u32 s{S_W}, 0
    s_cselect_b32 s80, 0xffffff00, s80
    v_cndmask_b32 v4, v4, v14, vcc
    s_mov_b32 s64, {(2**32+21)//22}
    s_mul_i32 s63, s{S_HP}, 112
    """)
    def wvoff(dst, uadd):
        k.e(f"""
        s_lshl_b32 s60, s{S_W}, 6
        s_add_i32 s60, s60, {uadd*64}
        v_add_u32 v10, s60, v1
        v_mul_hi_u32 v11, v10, s64
        v_mul_u32_u24 v12, 22, v11
        v_sub_u32 v12, v10, v12
        v_and_b32 v13, 0x33, v11
        v_bfe_u32 v14, v11, 2, 1
        v_lshl_or_b32 v13, v14, 3, v13
        v_bfe_u32 v14, v11, 3, 1
        v_lshl_or_b32 v13, v14, 2, v13
        v_mul_u32_u24 v13, 2688, v13
        v_mul_u32_u24 v14, 37, v12
        v_lshrrev_b32 v14, 8, v14
        v_mul_u32_u24 v15, {896-112}, v14
        v_lshl_add_u32 v15, v12, 4, v15
        v_add3_u32 v13, v13, v15, s63
        v_cmp_gt_u32 vcc, 21, v12
        v_mov_b32 v14, {OOB}
        s_nop 0
        v_cndmask_b32 v{dst}, v14, v13, vcc
        """)
    rot_setup(k, S_RG, S_HP, ROT_A)
    wvoff(6, -2)
    k.e("s_waitcnt lgkmcnt(0)")
    srd(k, SX, 16, 17, XB); srd(k, SWA, 18, 19, 448*2688)
    nis={}
    def dma(p, i):
        sl=(p%3)*SLOT+i*8192
        if i==0: k.e(f"s_add_u32 s3, s3, 1\ns_cmp_eq_u32 s3, 7\ns_cselect_b32 s3, 0, s3\ns_lshl_b32 s10, s3, 7\ns_mul_i32 s11, s3, {64*2688}")
        k.e(f"s_add_u32 m0, s{S_W1K}, {sl}")
        if i==0: k.e(f"s_mov_b64 exec, s[80:81]\nbuffer_load_dwordx4 v4, s[{SX}:{SX+3}], s10 offen lds\ns_mov_b64 exec, -1")
        elif i<3: k.e(f"s_add_u32 s56, s10, {(i-1)*64*896}\nbuffer_load_dwordx4 v5, s[{SX}:{SX+3}], s56 offen lds")
        elif i==3: k.e(f"s_mul_i32 s56, s65, s3\nbuffer_load_dwordx4 v6, s[{SMIX}:{SMIX+3}], s56 offen lds")
        else: k.e(f"s_nop 0\nbuffer_load_dwordx4 v{(2,3)[i-4]}, s[{SWA}:{SWA+3}], s11 offen lds")
        vq.issue(("S",p)); nis[p]=nis.get(p,0)+1
    stage=lambda p: [ (lambda i=i: dma(p,i)) for i in range(6)]
    pend=stage(0)+stage(1)+stage(2)
    st_row_load(k, vq)
    for _ in range(3): pend.pop(0)()
    k.e(f"""
    v_add_u32 v10, {128*896}, v5
    s_cmp_lt_u32 s{S_W}, 2
    s_cselect_b64 vcc, -1, 0
    v_cndmask_b32 v6, v6, v10, vcc
    s_movk_i32 s65, 128
    s_cselect_b32 s65, s65, {64*2688}
    s_cselect_b32 s{SMIX}, s16, s18
    s_cselect_b32 s{SMIX+1}, s17, s19
    s_cselect_b32 s{SMIX+2}, s{SX+2}, s{SWA+2}
    s_mov_b32 s{SMIX+3}, 0x20000
    """)
    pend.pop(0)()
    wvoff(2, 6); pend.pop(0)()
    wvoff(3, 14); pend.pop(0)()
    srd(k, SWS, 34, 35, WS_BYTES); srd(k, SDBG, 32, 33, 256); srd(k, SWB, 28, 29, 1792*896)
    k.e(f"s_lshr_b32 s66, s{S_W}, 1\ns_and_b32 s64, s{S_W}, 1\ns_mul_i32 s60, s66, {3*2048}")
    x_read_addr(k, 7, 8, 16)
    k.e(f"""
    v_add_u32 v{XO}, s60, v7
    v_add_u32 v{XO+1}, s60, v8
    v_lshrrev_b32 v18, 2, v16
    v_and_b32 v19, 3, v16
    v_lshrrev_b32 v20, 1, v17
    v_lshl_add_u32 v18, v20, 4, v18
    v_and_b32 v20, 1, v17
    v_lshl_add_u32 v18, v20, 2, v18
    v_mul_u32_u24 v18, 352, v18
    s_mul_i32 s60, s64, 56
    s_add_u32 s60, s60, {AWOFF}
    v_add_u32 v18, s60, v18
    v_lshl_add_u32 v9, v19, 3, v18
    v_min_u32 v19, 2, v19
    v_lshl_add_u32 v{XO+2}, v19, 3, v18
    v_add_u32 v{XO+2}, 32, v{XO+2}
    s_bitcmp1_b32 s66, 0
    s_cselect_b64 vcc, -1, 0
    v_cndmask_b32 v{XO+3}, v9, v{XO+2}, vcc
    v_add_u32 v{XO+4}, 224, v{XO+3}
    s_lshr_b32 s60, s66, 1
    s_mul_i32 s60, s60, 112
    v_add_u32 v{XO+3}, s60, v{XO+3}
    v_lshrrev_b32 v16, 3, v1
    v_mul_u32_u24 v16, {SLOT}, v16
    v_and_b32 v17, 7, v1
    v_lshl_add_u32 v16, v17, 4, v16
    v_mov_b32 v20, 0x3f803f80
    v_mov_b32 v21, 0x3f803f80
    v_mov_b32 v22, 0x3f803f80
    v_mov_b32 v23, 0x3f803f80
    s_mov_b64 exec, 0xffffff
    ds_write_b128 v16, v[20:23]
    s_mov_b64 exec, -1
    s_mov_b32 s92, 7
    s_mov_b32 s93, 9
    s_mov_b32 s94, 10
    s_mov_b32 s95, 10
    s_lshl_b32 s56, s{S_W}, 6
    v_add_u32 v{VGL}, s56, v1
    s_sub_u32 s56, s62, 16
    v_add_u32 v{VGA}, s56, v{VGL}
    v_cmp_gt_u32 vcc, 208, v{VGL}
    s_movk_i32 s56, 2048
    v_cmp_gt_u32 s[60:61], s56, v{VGA}
    v_lshlrev_b32 v{VGA}, 4, v{VGA}
    v_add_u32 v{VGA}, {STATS_OFF}, v{VGA}
    s_and_b64 s[84:85], vcc, s[60:61]
    v_lshlrev_b32 v{VGL}, 2, v{VGL}
    v_add_u32 v{VGL}, {A_STAT}, v{VGL}
    v_mov_b32 v16, {A_STAT+2048}
    v_cndmask_b32 v{VGL}, v16, v{VGL}, vcc
    s_mov_b32 s77, 1
    """)
    w2_setup(k, 16, 77)
    p2_addr(k, 3, 16)
    area_base(k, 7, 81920, 131072)
    AREA={0:49152,1:98304,2:"s7",3:49152,4:98304,5:"s7",6:49152,7:98304,8:"s7"}
    ZI=[208,224,160,176,192,96,128,144,240]
    D_=lambda i: w2_dma(k,vq,i,AREA[i],SWB,SWA)
    TR=lambda i,tmp=TT: w2_tr(k,vq,i,AREA[i],tmp,ZI[i])
    RADDR=[7,8,XO,XO+1,9,XO+2,XO+3,XO+4]
    cur={"slot":0}
    def setslot(s):
        d=(s-cur["slot"])*SLOT
        if d:
            for r in RADDR: k.e(f"v_add_u32 v{r}, {d&0xffffffff}, v{r}")
        cur["slot"]=s
    def reads(ks):
        P=ks&1; L=[]
        def tr(fr, areg, off):
            b=A_WF+P*32+fr*4
            for h in range(2): L.append(f"ds_read_b64_tr_b16 v[{b+2*h}:{b+2*h+1}], v{areg} offset:{(ks&1)*32*352+off+h*8*352}")
        xr=lambda fr,areg,off: L.append(f"ds_read_b128 v[{A_XF+P*16+fr*4}:{A_XF+P*16+fr*4+3}], v{areg} offset:{off}")
        xr(0, XO+(ks&1), 2048)
        for sec in range(3): tr(sec*2, 9, sec*112); tr(sec*2+1, XO+2, sec*112)
        xr(1, XO+(ks&1), 4096); xr(2, XO+(ks&1), 6144); xr(3, 7+(ks&1), 0)
        tr(6, XO+3, 0); tr(7, XO+4, 0)
        return L
    def mfmas(ks):
        P=ks&1; L=[]
        def mm(a, fr, xf, ct):
            w=A_WF+P*32+fr*4; x=A_XF+P*16+xf*4; cc="0" if ks==0 else f"v[{a}:{a+3}]"
            A,B=(w,x) if ct else (x,w)
            L.append(f"v_mfma_f32_16x16x32_bf16 v[{a}:{a+3}], v[{A}:{A+3}], v[{B}:{B+3}], {cc}")
        for m in range(3):
            for t in range(6): mm(A_ACC+(m*6+t)*4, t, m, t<4)
        mm(A_H, 6, 3, True); mm(A_H+4, 7, 3, False)
        return L
    if T1:
        k.e(f"s_mov_b64 s[4:5], s[{SMIX}:{SMIX+1}]\ns_mov_b32 s6, s{SMIX+2}")
        touch1(k, vq)
        k.e(f"s_mov_b64 s[{SMIX}:{SMIX+1}], s[4:5]\ns_mov_b32 s{SMIX+2}, s6")
    vwait(k, vq, lambda t: t==("ROW",))
    stats_compute(k, ZST, ZST+4)
    for _ in range(A_PRO-6): pend.pop(0)()
    vwait(k, vq, lambda t: t==("S",0), "lgkmcnt(0)")
    k.e("s_barrier")
    stamp(k,1)
    for i,s_ in enumerate(reads(0)):
        if i==14: k.e("s_waitcnt lgkmcnt(6)")
        k.e(s_)
    for ks in range(14):
        p=ks>>1
        if ks&1 and ks<13:
            assert nis.get(p+1,0)==6, (ks,nis)
            vwait(k, vq, lambda t: t[0]=="S" and t[1]<=p+1, "lgkmcnt(0)")
            k.e("s_barrier")
            setslot((p+1)%3)
            if p+3<7: pend+=stage(p+3)
        else: k.e("s_waitcnt lgkmcnt(0)")
        if KST: stamp(k,10+ks)
        now=pend[:A_BUD]; del pend[:A_BUD]
        if ks==0: now.append(lambda: st_nonce_load(k,vq))
        if ks==3: now.insert(0,lambda: st_publish(k,vq))
        if ks==9: now.append(lambda: st_gran_load(k,vq))
        if ks==11:
            def gc():
                st_gran_check(k, vq)
                k.e(f"""
                v_rcp_f32 v{G4+1}, v{G4+1}
                v_sub_f32 v{G4}, 0, v{G4}
                v_cndmask_b32 v{G4}, 0, v{G4}, s[84:85]
                v_cndmask_b32 v{G4+1}, 0, v{G4+1}, s[84:85]
                ds_write2st64_b32 v{VGL}, v{G4}, v{G4+1} offset0:0 offset1:4
                """)
            now.append(gc)
        if ks>=11: now=D_(ks-11)+now
        emit_kstep(k, mfmas(ks), reads(ks+1) if ks<13 else [], now, ((ks+1)&1)*20, 40, rd2=6)
    assert not pend
    stamp(k,2)
    k.e("s_setprio 0")
    srd(k, SWA, 20, 21, 448*896)
    side=[]; cnt={"c":0}
    def E(txt, every=8):
        for l in txt.split("\n"):
            if not l.strip(): continue
            k.e(l); cnt["c"]+=1
            if side and cnt["c"]%every==0 and not l.strip().startswith(("s_cmp","s_cselect","s_bitcmp")): side.pop(0)()
    E(f"""
    v_lshlrev_b32 v2, 4, v1
    s_mul_i32 s60, s64, 6144
    s_lshl_b32 s61, s66, 10
    s_add_u32 s61, s61, s60
    v_add_u32 v3, s61, v2
    s_and_b32 s61, s66, 1
    s_lshl_b32 s61, s61, 10
    s_add_u32 s61, s61, s60
    v_add_u32 v4, s61, v2
    s_lshl_b32 s61, s{S_W}, 12
    v_add_u32 v5, s61, v2
    {"s_nop 15" if env("DNOP",0) else ""}
    {"s_nop 15" if env("DNOP",0) else ""}
    {"s_nop 15" if env("DNOP",0) else ""}
    s_barrier
    ds_write_b128 v3, v[{A_H}:{A_H+3}]
    ds_write_b128 v4, v[{A_H+4}:{A_H+7}] offset:4096
    """)
    for t in range(4):
        a=A_ACC+(2*6+2+t)*4
        E(f"ds_write_b128 v5, v[{a}:{a+3}] offset:{12288+t*1024}")
    CSQ=96; CSK=104; CSV=[112,114]; NMU=[116,118,120,122]; RS=[124,126,192,194]; SEL=[113,115,117,119]; PK=128; PV=136; V0=144; V1=152; VS=88
    E(f"""
    v_lshrrev_b32 v3, 4, v1
    v_lshlrev_b32 v4, 8, v3
    v_add_u32 v4, s60, v4
    v_and_b32 v5, 15, v1
    v_lshlrev_b32 v6, 4, v5
    v_add_u32 v6, s60, v6
    s_add_u32 s61, s60, 2048
    s_lshl_b32 s63, s{S_W}, 12
    s_add_u32 s63, s63, {12288-8192}
    s_cmp_eq_u32 s66, 0
    s_cselect_b32 s61, s61, s63
    v_add_u32 v7, s61, v2
    s_mul_i32 s61, s66, {48*4}
    s_add_u32 s61, s61, {A_STAT}
    v_lshl_add_u32 v8, v5, 2, s61
    v_lshl_add_u32 v9, v3, 4, s61
    """)
    for i in range(4): E(f"ds_read_b32 v{NMU[i]}, v8 offset:{i*64}\nds_read_b32 v{RS[i]}, v8 offset:{1024+i*64}")
    E(f"""
    v_and_b32 v12, 1, v5
    v_cmp_eq_u32 s[86:87], 1, v12
    v_lshl_add_u32 v13, v3, 2, v12
    v_cmp_le_u32 s[88:89], v13, v5
    v_add_u32 v13, 2, v13
    v_cmp_le_u32 s[90:91], v13, v5
    v_cmp_eq_u32 s[82:83], 3, v3
    s_or_b32 s61, s{S_RG}, s66
    s_cmp_eq_u32 s61, 0
    s_cselect_b64 s[80:81], -1, 0
    v_mov_b32 v12, 0x0c0c0100
    v_mov_b32 v13, 0x01000c0c
    v_cndmask_b32 v12, v12, v13, s[86:87]
    v_mov_b32 v13, 0x0c0c0302
    v_mov_b32 v14, 0x03020c0c
    v_cndmask_b32 v13, v13, v14, s[86:87]
    v_mov_b32 v14, 0x0c0c0c0c
    v_cndmask_b32 v{SEL[0]}, v12, v14, s[88:89]
    v_cndmask_b32 v{SEL[1]}, v13, v14, s[90:91]
    v_cndmask_b32 v{SEL[2]}, v14, v12, s[88:89]
    v_cndmask_b32 v{SEL[3]}, v14, v13, s[90:91]
    s_waitcnt lgkmcnt(0)
    s_barrier
    ds_read_b128 v[{CSK}:{CSK+3}], v4 offset:2048
    ds_read_b128 v[{CSK+4}:{CSK+7}], v4 offset:3072
    ds_read_b128 v[{CSQ}:{CSQ+3}], v4
    ds_read_b128 v[{CSQ+4}:{CSQ+7}], v4 offset:1024
    ds_read_b128 v[{PK}:{PK+3}], v7
    ds_read_b128 v[{PK+4}:{PK+7}], v7 offset:1024
    ds_read_b32 v{CSV[0]}, v6 offset:4096
    ds_read_b32 v{CSV[1]}, v6 offset:5120
    ds_read_b128 v[{PV}:{PV+3}], v7 offset:2048
    ds_read_b128 v[{PV+4}:{PV+7}], v7 offset:3072
    ds_read_b128 v[{VS}:{VS+3}], v9
    ds_read_b128 v[{VS+4}:{VS+7}], v9 offset:1024
    """)
    P=lambda x: f"v[{x}:{x+1}]"
    def foldT(a, cs, i):
        s_=""
        for r in range(0,8,2): s_+=f"v_pk_fma_f32 {P(a+r)}, {P(NMU[i])}, {P(cs+r)}, {P(a+r)} op_sel_hi:[0,1,1]\n"
        for r in range(0,8,2): s_+=f"v_pk_mul_f32 {P(a+r)}, {P(RS[i])}, {P(a+r)} op_sel_hi:[0,1]\n"
        for r in range(4): s_+=f"v_cvt_pk_bf16_f32 v{a+r}, v{a+2*r}, v{a+2*r+1}\n"
        return s_
    def foldV(a, i):
        s_=""
        for t in range(2):
            for r in (0,2): s_+=f"v_pk_fma_f32 {P(a+4*t+r)}, {P(VS+r)}, {P(CSV[t])}, {P(a+4*t+r)} op_sel_hi:[1,0,1]\n"
        for t in range(2):
            for r in (0,2): s_+=f"v_pk_mul_f32 {P(a+4*t+r)}, {P(VS+4+r)}, {P(a+4*t+r)}\n"
        for t in range(2):
            d=(V0,V1)[t]+2*i
            s_+=f"v_cvt_pk_bf16_f32 v{d}, v{a+4*t}, v{a+4*t+1}\nv_cvt_pk_bf16_f32 v{d+1}, v{a+4*t+2}, v{a+4*t+3}\n"
        if i<3: s_+=f"ds_read_b128 v[{VS}:{VS+3}], v9 offset:{(i+1)*64}\nds_read_b128 v[{VS+4}:{VS+7}], v9 offset:{1024+(i+1)*64}\n"
        return s_
    am=lambda m: A_ACC+m*24
    KFr=lambda i: PK if i==0 else am(i-1)+8
    E("s_waitcnt lgkmcnt(8)")
    E(foldT(am(0)+8, CSK, 1)); E(foldT(am(0), CSQ, 1))
    E("s_waitcnt lgkmcnt(0)")
    TR(0)
    if TRW: k.e("s_waitcnt lgkmcnt(0)")
    E(foldT(PK, CSK, 0)); E(foldV(PV, 0))
    def smm(m):
        q=am(m)
        E(f"v_cndmask_b32 v{q+2}, v{q+2}, 0, s[82:83]\nv_cndmask_b32 v{q+3}, v{q+3}, 0, s[82:83]\ns_nop 1")
        k.e(f"v_mfma_f32_16x16x32_bf16 v[{q+4}:{q+7}], v[{KFr(m)}:{KFr(m)+3}], v[{q}:{q+3}], 0")
        k.e(f"v_mfma_f32_16x16x32_bf16 v[{q+12}:{q+15}], v[{KFr(m+1)}:{KFr(m+1)+3}], v[{q}:{q+3}], 0")
    smm(0)
    for m in (1,2):
        E(foldT(am(m)+8, CSK, m+1)); E(foldT(am(m), CSQ, m+1))
        smm(m)
        E("s_waitcnt lgkmcnt(0)")
        side.extend(D_(m+2)); TR(m)
        if TRW: k.e("s_waitcnt lgkmcnt(0)")
        E(foldV(am(m-1)+16, m))
    E("s_waitcnt lgkmcnt(0)")
    side.extend(D_(5))
    E(foldV(am(2)+16, 3))
    CSC=1.0/math.sqrt(28.0)*math.log2(math.e)
    E(f"""
    s_mul_i32 s61, s66, 48
    s_add_u32 s61, s61, s62
    v_add_u32 v2, s61, v5
    s_lshl_b32 s63, s{S_HP}, 1
    s_add_u32 s63, s63, s64
    s_add_u32 s63, s63, 56
    s_lshl_b32 s63, s63, 10
    s_mov_b32 s58, {(2**32+173)//174}
    s_mov_b32 s59, {hex(f2u(CSC))}
    s_movk_i32 s60, 2048
    v_mov_b32 v12, 0xff800000
    """)
    X=lambda m: am(m)+16
    all3=lambda fmt: E("\n".join(fmt(m) for m in range(3)))
    all3(lambda m: f"v_cndmask_b32 v{X(m)}, v{am(m)+4}, v{am(m)+5}, s[86:87]\nv_cndmask_b32 v{X(m)+1}, v{am(m)+6}, v{am(m)+7}, s[86:87]\nv_cndmask_b32 v{X(m)+2}, v{am(m)+12}, v{am(m)+13}, s[86:87]\nv_cndmask_b32 v{X(m)+3}, v{am(m)+14}, v{am(m)+15}, s[86:87]")
    E(f"v_cndmask_b32 v{X(0)}, v{X(0)}, v12, s[80:81]\nv_cndmask_b32 v{X(0)+1}, v{X(0)+1}, v12, s[80:81]")
    all3(lambda m: f"v_cndmask_b32 v{X(m)}, v{X(m)}, v{X(m)+2}, s[88:89]\nv_cndmask_b32 v{X(m)+1}, v{X(m)+1}, v{X(m)+3}, s[90:91]")
    all3(lambda m: f"v_max_f32 v{X(m)+2}, v{X(m)}, v{X(m)+1}")
    def xred(op):
        for sw in ("v_permlane16_swap_b32","v_permlane32_swap_b32"):
            all3(lambda m: f"v_mov_b32 v{X(m)+3}, v{X(m)+2}")
            E("s_nop 1")
            all3(lambda m: f"{sw} v{X(m)+2}, v{X(m)+3}")
            E("s_nop 0")
            all3(lambda m: f"{op} v{X(m)+2}, v{X(m)+2}, v{X(m)+3}")
    xred("v_max_f32")
    all3(lambda m: f"v_sub_f32 v{X(m)}, v{X(m)}, v{X(m)+2}\nv_sub_f32 v{X(m)+1}, v{X(m)+1}, v{X(m)+2}")
    all3(lambda m: f"v_mul_f32 v{X(m)}, s59, v{X(m)}\nv_mul_f32 v{X(m)+1}, s59, v{X(m)+1}")
    all3(lambda m: f"v_exp_f32 v{X(m)}, v{X(m)}\nv_exp_f32 v{X(m)+1}, v{X(m)+1}")
    E("s_nop 0")
    all3(lambda m: f"v_add_f32 v{X(m)+2}, v{X(m)}, v{X(m)+1}")
    xred("v_add_f32")
    all3(lambda m: f"v_rcp_f32 v{X(m)+2}, v{X(m)+2}")
    E("s_nop 0")
    all3(lambda m: f"v_mul_f32 v{X(m)}, v{X(m)}, v{X(m)+2}\nv_mul_f32 v{X(m)+1}, v{X(m)+1}, v{X(m)+2}")
    all3(lambda m: f"v_cvt_pk_bf16_f32 v{X(m)}, v{X(m)}, v{X(m)+1}")
    all3(lambda m: "\n".join(f"v_perm_b32 v{X(m)+4+i}, v{X(m)}, v{X(m)}, v{SEL[i]}" for i in range(4)))
    E("s_nop 1")
    for m in range(3):
        k.e(f"v_mfma_f32_16x16x32_bf16 v[{am(m)}:{am(m)+3}], v[{V0+2*m}:{V0+2*m+3}], v[{X(m)+4}:{X(m)+7}], 0")
        k.e(f"v_mfma_f32_16x16x32_bf16 v[{am(m)+4}:{am(m)+7}], v[{V1+2*m}:{V1+2*m+3}], v[{X(m)+4}:{X(m)+7}], 0")
    for m in range(3):
        E(f"""
        v_mul_hi_u32 v12, v2, s58
        v_mul_u32_u24 v13, 174, v12
        v_sub_u32 v13, v2, v13
        v_cmp_lt_u32 vcc, 94, v13
        v_mul_u32_u24 v12, 11, v12
        v_mov_b32 v14, {OOB}
        v_addc_co_u32 v13, vcc, 1, v13, vcc
        v_lshrrev_b32 v15, 4, v13
        v_add_u32 v12, v12, v15
        v_mul_u32_u24 v12, {A2_VT}, v12
        v_and_b32 v13, 15, v13
        v_cmp_gt_u32 vcc, s60, v2
        v_lshl_add_u32 v12, v13, 4, v12
        v_lshl_add_u32 v12, v3, 8, v12
        v_add_u32 v2, 16, v2
        v_cndmask_b32 v{4+m}, v14, v12, vcc
        """)
    while side: side.pop(0)()
    for m in range(3):
        a=am(m)
        for r in range(4): k.e(f"v_cvt_pk_bf16_f32 v{a+8+r}, v{a+2*r}, v{a+2*r+1}")
        k.e(f"buffer_store_dwordx4 v[{a+8}:{a+11}], v{4+m}, s[{SWS}:{SWS+3}], s63 offen {STF}"); vq.issue(("O",))
    stamp(k,3)
    k.e(f"s_lshl_b32 s63, s{S_RG}, 6\ns_lshl_b32 s56, s{S_HP}, 3\ns_add_u32 s63, s63, s56\ns_add_u32 s63, s63, {AFLAG_OFF}")
    k.e(f"s_cmp_lt_u32 s{S_PJ}, 12\ns_cbranch_scc1 kA_p2\ns_waitcnt vmcnt(0)\ns_barrier\ns_cmp_lg_u32 s{S_W}, 0\ns_cbranch_scc1 k_done")
    flag_store(k,63)
    k.e("s_endpgm\nkA_p2:")
    def fin():
        for i in range(3,6):
            TR(i); k.e("s_waitcnt lgkmcnt(0)")
            for f in D_(i+3): f()
        TR(6); TR(7); TR(8,8)
    gen_P2(k, vq, 3, ZI, fin, 16, [64+4*i for i in range(8)], ("O",), 63)

def gen_all():
    k=K("kk")
    k.e(f"""
    s_cmp_ge_u32 s2, 256
    s_cbranch_scc1 k_done
    s_load_dwordx16 s[16:31], s[0:1], 0
    s_load_dwordx4 s[32:35], s[0:1], 64
    v_lshrrev_b32 v2, 6, v0
    v_and_b32 v1, 63, v0
    s_and_b32 s56, s2, 7
    v_readfirstlane_b32 s{S_W}, v2
    s_lshr_b32 s57, s2, 3
    s_lshr_b32 s58, s56, 1
    s_and_b32 s59, s56, 1
    s_lshl_b32 s{S_W1K}, s{S_W}, 10
    s_lshl_b32 s61, s2, 3
    s_add_u32 s61, s61, s{S_W}
    s_mul_i32 s61, s61, 896
    v_lshlrev_b32 v{ZST+4}, 4, v1
    v_mov_b32 v{ZST}, 0
    v_mov_b32 v{ZST+1}, 0
    v_mov_b32 v{ZST+2}, 0
    v_mov_b32 v{ZST+3}, 0
    """)
    if CPF:
        k.e(f"""
        s_getpc_b64 s[{SMIX}:{SMIX+1}]
        k_pc:
        s_mov_b32 s{SMIX+2}, k_end-k_pc
        s_mov_b32 s{SMIX+3}, 0x20000
        s_mul_i32 s60, s57, {CPF*128}
        v_lshlrev_b32 v3, 7, v0
        v_cmp_gt_u32 vcc, {CPF}, v0
        v_mov_b32 v4, {OOB}
        s_and_b32 s{SMIX+1}, s{SMIX+1}, 0xffff
        v_cndmask_b32 v3, v4, v3, vcc
        buffer_load_dword v{VDUM}, v3, s[{SMIX}:{SMIX+3}], s60 offen
        """)
    stamp(k,0)
    k.e("s_cmp_ge_u32 s57, 21\ns_cbranch_scc1 kA")
    gen_F(k)
    gen_A(k)
    k.e("k_done:\nk_end:")
    return kernel_text(KNAME, k.text(), 256, 102)

HEADER=open("parallel_sum__sliding_local_dilated__geglu_ffn__prompt.s.ref").read().split("; @launch")[0]
if __name__=="__main__":
    out=sys.argv[1]
    t,d=gen_all()
    txt=HEADER+f"; @launch grid=(256,1,1) block=(512,1,1) lds={LDS_BYTES}\n"+'.amdgcn_target "amdgcn-amd-amdhsa--gfx950"\n.text\n'+t+'.section .rodata,"a"\n.p2align 6\n'+d
    open(out,"w").write(txt)
    print(out, len(txt), txt.count("\n"))
```

```python
import sys, math, os, struct
from asmlib import *
def env(n,d): return type(d)(os.environ.get(n,d))
STAMPS=env("STAMPS",0); KST=env("KST",0); STW=env("STW",7)
ROT_A=env("ROT_A",1); ROT_F=env("ROT_F",0); ROT2=env("ROT2",1); PRIO=env("PRIO",1)
F_PRO=env("F_PRO",3); F_BUD=env("F_BUD",4); A_PRO=env("A_PRO",9); A_BUD=env("A_BUD",4)
FD=[env("FD0",9),11,12,13]; EPI=env("EPI",2); AD=[env("AD0",10),env("AD1",12)]; CPF=env("CPF",12)
T1=env("T1",0)
T2KS=env("T2KS",-1)
LDF=os.environ.get("LDF","sc1"); STF=os.environ.get("STF","sc1")
KNAME="parallel_sum__sliding_local_dilated__geglu_ffn__prompt_kernel"

NKS=72; A2_VT=NKS*1024
STATS_OFF=10*1024*1024; FLAG_OFF=STATS_OFF+65536; AFLAG_OFF=FLAG_OFF+8192
O_OFF=12*1024*1024; STAMP_OFF=32*1024*1024; WS_BYTES=0x10000000; XB=2048*896
OOB=0x80000000; LDS_BYTES=163840
C0=-2.0*math.sqrt(2.0/math.pi)*math.log2(math.e); C1=C0*0.044715
def f2u(x): return struct.unpack("<I",struct.pack("<f",x))[0]
SPIN=1<<15

class Q:
    def __init__(s, mx=63): s.q=[]; s.mx=mx
    def issue(s, tag): s.q.append(tag)
    def need(s, pred):
        last=-1
        for i,t in enumerate(s.q):
            if pred(t): last=i
        if last<0: return None
        n=len(s.q)-1-last; s.q=s.q[last+1:]
        return min(n, s.mx)
class Both:
    def __init__(s,a,b): s.a=a; s.b=b
    def issue(s,t): s.a.issue(t); s.b.issue(t)
    def need(s,p):
        c=[v for v in (s.a.need(p), s.b.need(p)) if v is not None]
        if not c: return None
        n=min(c)
        s.a.q=s.a.q[max(0,len(s.a.q)-n):] if n else []
        s.b.q=s.b.q[max(0,len(s.b.q)-n):] if n else []
        return n
def vwait(k, vq, pred, extra=""):
    n=vq.need(pred)
    if n is not None: k.e(f"s_waitcnt vmcnt({n}) {extra}")
    elif extra: k.e(f"s_waitcnt {extra}")

S_W=12; S_W1K=13; S_J=14; S_CG=15
SX=36; SWA=40; SWB=44; SWS=48; SMIX=52; SDBG=96
S_NON=68; S_PJ=70; S_CT=71; S_T0=72; S_ROT=76
G4=12; TT=240; VH=244; VO=245; VT=246; VPA=247; VGA=248; VGL=249; VOA=250; VDUM=251; ZST=224
def srd(k, d, lo, hi, size):
    k.e(f"s_mov_b32 s{d}, s{lo}\ns_mov_b32 s{d+1}, s{hi}\ns_mov_b32 s{d+2}, {size}\ns_mov_b32 s{d+3}, 0x20000")
def stamp(k, i):
    if STAMPS: k.e(f"s_memrealtime s[100:101]\ns_waitcnt lgkmcnt(0)\nv_writelane_b32 v0, s100, {i}\ns_memtime s[100:101]\ns_waitcnt lgkmcnt(0)\nv_writelane_b32 v0, s100, {32+i}")
DBGW=env("DBGW",-1)
def stamp_out(k):
    if not STAMPS: return
    if DBGW>=0:
        lab=k.lab("do")
        k.e(f"s_cmp_lg_u32 s{S_W}, {STW}\ns_cbranch_scc1 {lab}\ns_mov_b32 s58, 8\ns_cmp_eq_u32 s2, {DBGW+168}\ns_cselect_b32 s58, 36, s58\ns_cselect_b32 s59, {DBGW}, s2\ns_cmp_lg_u32 s59, {DBGW}\ns_cbranch_scc1 {lab}")
        k.e("v_readlane_b32 s56, v0, 0")
        for n,i in enumerate([1,2,3,4,29,5,9]):
            k.e(f"v_readlane_b32 s57, v0, {i}\ns_nop 3\ns_sub_u32 s57, s57, s56\nv_writelane_b32 v3, s57, {n}")
        srd(k, SDBG, 32, 33, 256)
        k.e(f"v_lshlrev_b32 v2, 2, v1\ns_mov_b64 exec, 0x7f\nbuffer_store_dword v3, v2, s[{SDBG}:{SDBG+3}], s58 offen\n{lab}:")
        return
    lab=k.lab("so")
    k.e(f"s_cmp_lg_u32 s{S_W}, {STW}\ns_cbranch_scc1 {lab}\ns_lshl_b32 s56, s2, 8\ns_add_u32 s56, s56, {STAMP_OFF}\nv_lshlrev_b32 v2, 2, v1")
    k.e(f"buffer_store_dword v0, v2, s[{SWS}:{SWS+3}], s56 offen\n{lab}:")

def allsum(k, v, t):
    for mod in ["quad_perm:[1,0,3,2]","quad_perm:[2,3,0,1]","row_half_mirror","row_mirror"]:
        k.e(f"s_nop 1\nv_add_f32_dpp v{v}, v{v}, v{v} {mod} row_mask:0xf bank_mask:0xf")
    for sw in ["v_permlane16_swap_b32","v_permlane32_swap_b32"]:
        k.e(f"v_mov_b32 v{t}, v{v}\ns_nop 1\n{sw} v{v}, v{t}\ns_nop 1\nv_add_f32 v{v}, v{v}, v{t}")
def rbf16(k, v): k.e(f"v_cvt_pk_bf16_f32 v{v}, v{v}, v{v}\nv_lshlrev_b32 v{v}, 16, v{v}")
def stats_compute(k, d, t):
    u=t+2
    for i in range(4): k.e(f"v_lshlrev_b32 v{u+2*i}, 16, v{d+i}\nv_and_b32 v{u+2*i+1}, 0xffff0000, v{d+i}")
    k.e(f"v_add_f32 v{t}, v{u}, v{u+1}\nv_add_f32 v{t+1}, v{u+2}, v{u+3}\nv_add_f32 v{d}, v{u+4}, v{u+5}\nv_add_f32 v{d+1}, v{u+6}, v{u+7}\nv_add_f32 v{t}, v{t}, v{t+1}\nv_add_f32 v{d}, v{d}, v{d+1}\nv_add_f32 v{t}, v{t}, v{d}")
    allsum(k, t, u+8)
    k.e(f"v_mul_f32 v{t}, {hex(f2u(1.0/448))}, v{t}\nv_cmp_gt_u32 vcc, 56, v1")
    for i in range(8): k.e(f"v_sub_f32 v{u+i}, v{u+i}, v{t}")
    k.e(f"v_mul_f32 v{t+1}, v{u}, v{u}\nv_mul_f32 v{d}, v{u+1}, v{u+1}")
    for i in range(2,8,2): k.e(f"v_fmac_f32 v{t+1}, v{u+i}, v{u+i}\nv_fmac_f32 v{d}, v{u+i+1}, v{u+i+1}")
    k.e(f"v_add_f32 v{t+1}, v{t+1}, v{d}\nv_cndmask_b32 v{t+1}, 0, v{t+1}, vcc")
    allsum(k, t+1, u+8)
    k.e(f"v_mul_f32 v{t+1}, {hex(f2u(1.0/448))}, v{t+1}")
    rbf16(k, t); rbf16(k, t+1)
    k.e(f"v_add_f32 v{t+1}, {hex(f2u(1e-5))}, v{t+1}")
    rbf16(k, t+1)
    k.e(f"v_sqrt_f32 v{t+1}, v{t+1}\ns_nop 0")
    rbf16(k, t+1)

def st_row_load(k, vq):
    D=ZST
    k.e(f"s_mov_b32 exec_hi, 0x00ffffff\nbuffer_load_dwordx4 v[{D}:{D+3}], v{D+4}, s[{SX}:{SX+3}], s61 offen\ns_mov_b32 exec_hi, -1"); vq.issue(("ROW",))
def st_nonce_load(k, vq):
    k.e(f"v_mov_b32 v{G4+2}, 0\nbuffer_load_dwordx2 v[{G4}:{G4+1}], v{G4+2}, s[{SDBG}:{SDBG+3}], 0 offen sc0 sc1"); vq.issue(("NON",))
def st_publish(k, vq):
    D=ZST; a=k.lab("nok"); b=k.lab("nsp")
    vwait(k, vq, lambda t: t==("NON",))
    k.e(f"""
    v_readfirstlane_b32 s{S_NON}, v{G4}
    v_readfirstlane_b32 s{S_NON+1}, v{G4+1}
    s_cmp_lg_u32 s{S_NON}, 0
    s_cbranch_scc1 {a}
    s_mov_b32 s57, 0
    {b}:
    s_sleep 2
    buffer_load_dwordx2 v[{G4}:{G4+1}], v{G4+2}, s[{SDBG}:{SDBG+3}], 0 offen sc0 sc1
    s_add_u32 s57, s57, 1
    s_waitcnt vmcnt(0)
    v_readfirstlane_b32 s{S_NON}, v{G4}
    v_readfirstlane_b32 s{S_NON+1}, v{G4+1}
    s_cmp_lg_u32 s{S_NON}, 0
    s_cbranch_scc1 {a}
    s_cmp_lt_u32 s57, {SPIN}
    s_cbranch_scc1 {b}
    {a}:
    s_lshl_b32 s56, s2, 3
    s_add_u32 s56, s56, s{S_W}
    s_lshl_b32 s56, s56, 4
    s_add_u32 s56, s56, {STATS_OFF}
    v_mov_b32 v{D+6}, s{S_NON}
    v_mov_b32 v{D+7}, s{S_NON+1}
    s_mov_b64 exec, 1
    buffer_store_dwordx4 v[{D+4}:{D+7}], v{G4+2}, s[{SWS}:{SWS+3}], s56 offen sc0 sc1
    s_mov_b64 exec, -1
    """); vq.issue(("PUB",))
def st_gran_load(k, vq):
    k.e(f"buffer_load_dwordx4 v[{G4}:{G4+3}], v{VGA}, s[{SWS}:{SWS+3}], 0 offen sc0 sc1"); vq.issue(("GR",))
def st_gran_check(k, vq):
    a=k.lab("gok"); b=k.lab("gsp")
    vwait(k, vq, lambda t: t==("GR",))
    k.e(f"""
    v_cmp_ne_u64 vcc, s[{S_NON}:{S_NON+1}], v[{G4+2}:{G4+3}]
    s_and_b64 vcc, vcc, s[84:85]
    s_cbranch_scc0 {a}
    s_mov_b32 s57, 0
    {b}:
    s_sleep 2
    buffer_load_dwordx4 v[{G4}:{G4+3}], v{VGA}, s[{SWS}:{SWS+3}], 0 offen sc0 sc1
    s_add_u32 s57, s57, 1
    s_waitcnt vmcnt(0)
    v_cmp_ne_u64 vcc, s[{S_NON}:{S_NON+1}], v[{G4+2}:{G4+3}]
    s_and_b64 vcc, vcc, s[84:85]
    s_cbranch_scc0 {a}
    s_cmp_lt_u32 s57, {SPIN}
    s_cbranch_scc1 {b}
    {a}:
    """)

def rot_setup(k, a, b, on):
    if not on: k.e("s_mov_b32 s3, -1"); return
    k.e(f"""
    s_add_u32 s3, s{a}, s{b}
    s_mul_i32 s10, s3, 86
    s_lshr_b32 s10, s10, 8
    s_mul_i32 s10, s10, 3
    s_sub_u32 s3, s3, s10
    s_lshl_b32 s10, s3, 1
    s_cmp_eq_u32 s3, 2
    s_cselect_b32 s3, 5, s10
    s_sub_u32 s3, s3, 1
    """)
def x_read_addr(k, d0, d1, t):
    k.e(f"""
    v_and_b32 v{t}, 15, v1
    v_lshrrev_b32 v{t+1}, 4, v1
    v_lshrrev_b32 v{t+2}, 1, v{t}
    v_xor_b32 v{t+3}, v{t+1}, v{t+2}
    v_xor_b32 v{t+4}, 4, v{t+3}
    v_lshlrev_b32 v{t+2}, 7, v{t}
    v_lshl_add_u32 v{d0}, v{t+3}, 4, v{t+2}
    v_lshl_add_u32 v{d1}, v{t+4}, 4, v{t+2}
    """)

def touch1(k, vq):
    if not T1: return
    tab=[(28,49,1792*896),(20,13,448*896)]
    if T1>=2: tab+=[(24,49,448*3584),(26,49,448*3584),(18,37,448*2688),(16,56,XB)]
    lab=k.lab("t1")
    k.e(f"s_mov_b32 s58, 0\ns_mov_b32 s{SMIX+3}, 0x20000\ns_mov_b32 s{SMIX}, s28\ns_mov_b32 s{SMIX+1}, s29\ns_mov_b32 s{SMIX+2}, 0")
    for w,(p,n,sz) in enumerate(tab):
        k.e(f"s_cmp_eq_u32 s{S_W}, {7-w}\ns_cselect_b32 s{SMIX}, s{p}, s{SMIX}\ns_cselect_b32 s{SMIX+1}, s{p+1}, s{SMIX+1}\ns_cselect_b32 s{SMIX+2}, {sz}, s{SMIX+2}\ns_cselect_b32 s58, {n}, s58")
    k.e(f"""
    s_mul_i32 s59, s58, s2
    s_lshl_b32 s59, s59, 7
    v_cmp_gt_u32 vcc, s58, v1
    v_lshlrev_b32 v{VDUM}, 7, v1
    v_mov_b32 v16, {OOB}
    v_cndmask_b32 v16, v16, v{VDUM}, vcc
    buffer_load_dword v{VDUM}, v16, s[{SMIX}:{SMIX+3}], s59 offen
    """); vq.issue(("T1",))

def w2_setup(k, t, cls):
    k.e(f"""
    v_lshrrev_b32 v{t}, 3, v1
    v_and_b32 v{t+1}, 7, v1
    v_lshrrev_b32 v{t+2}, 4, v1
    v_lshlrev_b32 v{t+3}, 1, v{t+2}
    v_xor_b32 v{t+1}, v{t+1}, v{t+3}
    v_mul_u32_u24 v{VH}, 896, v{t}
    v_lshl_add_u32 v{VH}, v{t+1}, 4, v{VH}
    s_lshl_b32 s56, s{S_CT}, 7
    v_add_u32 v{VH}, s56, v{VH}
    v_mov_b32 v{t+1}, {OOB}
    v_cmp_gt_u32 vcc, 4, v{t}
    s_mul_i32 s78, s{S_W}, {7*32*896}
    s_mul_i32 s79, s{S_W}, {2*28*896}
    v_cndmask_b32 v{VO}, v{t+1}, v{VH}, vcc
    v_bfe_u32 v{t}, v1, 2, 2
    v_lshl_add_u32 v{t}, v{t+2}, 2, v{t}
    v_bfe_u32 v{t+1}, v{t}, 1, 2
    v_lshlrev_b32 v{t}, 7, v{t}
    v_and_b32 v{t+2}, 3, v1
    v_lshl_add_u32 v{t}, v{t+2}, 3, v{t}
    v_lshl_add_u32 v{VT}, v{t+1}, 5, v{t}
    s_lshl_b32 s56, s{S_W}, 12
    v_add_u32 v{VT}, s56, v{VT}
    """)
    if ROT2: k.e(f"s_lshl_b32 s{S_ROT}, s{cls}, 1\ns_add_u32 s{S_ROT}, s{S_ROT}, s{S_CT}\ns_sub_u32 s56, s{S_ROT}, 7\ns_cmp_ge_u32 s{S_ROT}, 7\ns_cselect_b32 s{S_ROT}, s56, s{S_ROT}")
    else: k.e(f"s_mov_b32 s{S_ROT}, 0")
    k.e(f"s_sub_u32 s77, s{S_ROT}, 1")
def area_base(k, sd, lo, hi):
    k.e(f"s_mov_b32 s{sd}, {lo}\ns_cmp_ge_u32 s{S_W}, 4\ns_cselect_b32 s{sd}, {hi-16384}, s{sd}")
def w2_dma(k, vq, i, base, sd, so):
    def one(q):
        pre=""
        if q==0:
            if i<7: pre=f"s_add_u32 s77, s77, 1\ns_cmp_eq_u32 s77, 7\ns_cselect_b32 s77, 0, s77\ns_mul_i32 s67, s77, {32*896}\ns_add_u32 s67, s67, s78\n"
            else:   pre=f"s_add_u32 s67, s79, {28*(i-7)*896}\n"
            pre+=f"s_lshl_b32 s9, s{S_W}, 12\ns_add_u32 s9, s9, {base}\n"
        v=VO if (i>=7 and q==3) else VH; srdn=sd if i<7 else so
        k.e(f"{pre}s_add_u32 m0, s9, {q*1024}\ns_add_u32 s56, s67, {q*8*896}\nbuffer_load_dwordx4 v{v}, s[{srdn}:{srdn+3}], s56 offen lds")
        vq.issue(("W2",i))
    return [ (lambda q=q: one(q)) for q in range(4)]
def w2_tr(k, vq, i, base, tmp, Z):
    vwait(k, vq, lambda t: t==("W2",i), "lgkmcnt(7)")
    k.e(f"v_add_u32 v{tmp}, {base}, v{VT}")
    for T in range(1,4): k.e(f"v_xor_b32 v{tmp+T}, {T*32}, v{tmp}")
    for T in range(4):
        for h in range(2): k.e(f"ds_read_b64_tr_b16 v[{Z+4*T+2*h}:{Z+4*T+2*h+1}], v{tmp+T} offset:{h*2048}")

def p2_addr(k, nm, t):
    k.e(f"s_mul_i32 s56, s{S_PJ}, 11")
    for i in range(4): k.e(f"s_add_u32 s{S_T0+i}, s56, s{92+i}\ns_mul_i32 s{S_T0+i}, s{S_T0+i}, {A2_VT}")
    k.e(f"""
    v_and_b32 v{t}, 15, v1
    v_min_u32 v{VPA}, 13, v{t}
    v_lshlrev_b32 v{VPA}, 3, v{VPA}
    s_lshl_b32 s56, s{S_PJ}, 7
    s_add_u32 s56, s56, {FLAG_OFF}
    v_add_u32 v{VPA}, s56, v{VPA}
    s_mul_i32 s56, s{S_PJ}, 174
    s_mul_i32 s57, s56, 342
    s_lshr_b32 s57, s57, 16
    s_add_u32 s58, s56, 173
    s_min_u32 s58, s58, 2047
    s_mul_i32 s58, s58, 342
    s_lshr_b32 s58, s58, 16
    s_cmp_lg_u32 s58, s57
    s_cselect_b32 s58, 15, 7
    v_min_u32 v{t}, s58, v{t}
    s_lshl_b32 s58, s57, 6
    s_add_u32 s58, s58, {AFLAG_OFF}
    v_lshl_add_u32 v{t}, v{t}, 3, s58
    v_cmp_lt_u32 vcc, 15, v1
    s_lshr_b32 s58, s{S_W}, 1
    s_and_b32 s59, s{S_W}, 1
    v_cndmask_b32 v{VPA}, v{VPA}, v{t}, vcc
    s_lshl_b32 s59, s59, 3
    s_cmp_eq_u32 s58, 1
    s_cselect_b32 s60, s93, s92
    s_cmp_eq_u32 s58, 2
    s_cselect_b32 s60, s94, s60
    s_cmp_eq_u32 s58, 3
    s_cselect_b32 s60, s95, s60
    s_lshl_b32 s60, s60, 4
    s_add_u32 s60, s60, s59
    v_lshrrev_b32 v{VOA}, 3, v1
    v_add_u32 v{VOA}, s60, v{VOA}
    v_cmp_lt_u32 vcc, 95, v{VOA}
    v_cmp_ne_u32 s[60:61], 0, v{VOA}
    s_movk_i32 s59, 96
    v_cmp_ne_u32 s[86:87], s59, v{VOA}
    v_subbrev_co_u32 v{VOA}, vcc, 1, v{VOA}, vcc
    s_and_b64 s[60:61], s[60:61], s[86:87]
    v_add_u32 v{VOA}, s56, v{VOA}
    s_cmp_lt_u32 s58, {nm}
    s_cselect_b64 s[86:87], -1, 0
    s_and_b64 s[60:61], s[60:61], s[86:87]
    v_mul_u32_u24 v{VOA}, 896, v{VOA}
    v_and_b32 v{t}, 7, v1
    v_lshl_add_u32 v{VOA}, v{t}, 4, v{VOA}
    s_lshl_b32 s56, s{S_CT}, 7
    v_add_u32 v{VOA}, s56, v{VOA}
    v_mov_b32 v{t}, {OOB}
    v_cndmask_b32 v{VOA}, v{t}, v{VOA}, s[60:61]
    """)

def flag_store(k, soff):
    k.e(f"""
    v_mov_b32 v2, s{S_NON}
    v_mov_b32 v3, s{S_NON+1}
    v_mov_b32 v4, 0
    s_mov_b64 exec, 1
    buffer_store_dwordx2 v[2:3], v4, s[{SWS}:{SWS+3}], s{soff} offen sc0 sc1
    s_mov_b64 exec, -1
    """)

def gen_P2(k, vq, nm, WF, pre, mid, fin, ACC, RING, otag, soff, tids, OAD):
    PV=2; AV=5; OA=6; PA=7; WA=8
    pre()
    vwait(k, vq, lambda t: t==otag)
    k.e("s_barrier")
    stamp(k,4)
    l1=k.lab("w0")
    k.e(f"v_mov_b32 v{OA}, v{VOA}\nv_mov_b32 v{PA}, v{VPA}\ns_cmp_lg_u32 s{S_W}, 0\ns_cbranch_scc1 {l1}")
    flag_store(k, soff)
    k.e(f"{l1}:")
    mid()
    k.e(f"s_mul_i32 s56, s{S_PJ}, 174\ns_movk_i32 s57, 96\ns_movk_i32 s58, 2048\nv_lshrrev_b32 v4, 4, v1\nv_lshlrev_b32 v4, 8, v4\nv_add_u32 v4, {O_OFF}, v4")
    for m in range(nm):
        d=OAD+m
        k.e(f"""
        s_lshl_b32 s59, {tids[m]}, 4
        v_and_b32 v{d}, 15, v1
        v_add_u32 v{d}, s59, v{d}
        v_cmp_lt_u32 vcc, 95, v{d}
        v_cmp_ne_u32 s[60:61], 0, v{d}
        v_cmp_ne_u32 s[64:65], s57, v{d}
        v_subbrev_co_u32 v{d}, vcc, 1, v{d}, vcc
        s_and_b64 s[60:61], s[60:61], s[64:65]
        v_add_u32 v{d}, s56, v{d}
        v_cmp_gt_u32 vcc, s58, v{d}
        v_lshrrev_b32 v{AV}, 4, v{d}
        v_and_b32 v{d}, 15, v{d}
        s_and_b64 s[60:61], s[60:61], vcc
        v_lshl_add_u32 v{d}, v{d}, 4, v4
        v_lshl_add_u32 v{d}, v{AV}, 14, v{d}
        v_mov_b32 v{AV}, {OOB}
        v_cndmask_b32 v{d}, v{AV}, v{d}, s[60:61]
        """)
    a=k.lab("pok"); b=k.lab("psp")
    k.e(f"""
    v_lshlrev_b32 v{AV}, 4, v1
    s_mul_i32 s64, s{S_W}, 7168
    s_add_u32 s66, s64, 7168
    s_lshl_b32 s65, s{S_ROT}, 10
    s_add_u32 s65, s65, s64
    s_sub_u32 s65, s65, 1024
    s_lshl_b32 s63, s{S_W}, 11
    s_cmp_lg_u32 s{S_W}, 0
    s_cbranch_scc1 {a}
    s_mov_b32 s57, 0
    s_mov_b32 exec_hi, 0
    {b}:
    buffer_load_dwordx2 v[{PV}:{PV+1}], v{PA}, s[{SWS}:{SWS+3}], 0 offen sc0 sc1
    s_add_u32 s57, s57, 1
    s_waitcnt vmcnt(0)
    v_cmp_ne_u64 vcc, s[{S_NON}:{S_NON+1}], v[{PV}:{PV+1}]
    s_cmp_eq_u64 vcc, 0
    s_cbranch_scc1 {a}
    s_sleep 2
    s_cmp_lt_u32 s57, {SPIN}
    s_cbranch_scc1 {b}
    {a}:
    s_mov_b32 exec_hi, -1
    s_barrier
    """)
    stamp(k,5)
    NI=5
    seq=[(m,i) for i in range(NI) for m in range(nm)]+[(m,i) for m in range(nm) for i in range(NI,9)]
    NR=len(RING)
    def ld(c):
        m,i=seq[c]; b=RING[c%NR]
        if i<7:
            if m==0:
                k.e("s_add_u32 s65, s65, 1024\ns_cmp_eq_u32 s65, s66\ns_cselect_b32 s65, s64, s65")
                if i>=NI: k.e(f"s_mov_b32 s{58+i-NI}, s65")
            k.e(f"s_add_u32 s56, s{S_T0+m}, s{65 if i<NI else 58+i-NI}\nbuffer_load_dwordx4 v[{b}:{b+3}], v{AV}, s[{SWS}:{SWS+3}], s56 offen {LDF}")
        else:
            k.e(f"buffer_load_dwordx4 v[{b}:{b+3}], v{OAD+m}, s[{SWS}:{SWS+3}], s63 offen offset:{(i-7)*1024} {LDF}")
        vq.issue(("A",c))
    nxt=0
    while nxt<NR: ld(nxt); nxt+=1
    k.e(f"buffer_load_dwordx4 v[{G4}:{G4+3}], v{OA}, s[{SX}:{SX+3}], 0 offen"); vq.issue(("XR",))
    fin()
    stamp(k,29)
    k.e(f"""
    v_and_b32 v{WA}, 15, v1
    v_lshrrev_b32 v{WA+1}, 4, v1
    v_and_b32 v{WA+2}, 2, v{WA+1}
    v_xor_b32 v{WA}, v{WA}, v{WA+2}
    v_lshlrev_b32 v{WA}, 4, v{WA}
    v_lshl_add_u32 v{WA}, v{WA+1}, 8, v{WA}
    s_lshl_b32 s56, s{S_W}, 14
    v_add_u32 v{WA}, s56, v{WA}
    v_xor_b32 v{WA+1}, 64, v{WA}
    v_xor_b32 v{WA+2}, 0x80, v{WA}
    v_xor_b32 v{WA+3}, 0xc0, v{WA}
    s_lshr_b32 s60, s{S_W}, 1
    s_and_b32 s61, s{S_W}, 1
    s_lshl_b32 s61, s61, 3
    v_lshrrev_b32 v{PV}, 3, v1
    v_add_u32 v{PV}, s61, v{PV}
    v_and_b32 v{PV+1}, 7, v1
    v_lshlrev_b32 v{PA}, 1, v{PV+1}
    v_xor_b32 v{PV}, v{PV}, v{PA}
    v_lshlrev_b32 v{PV+1}, 9, v{PV+1}
    v_lshl_add_u32 v{PV}, v{PV}, 4, v{PV+1}
    s_lshl_b32 s56, s60, 12
    v_add_u32 v{PV}, s56, v{PV}
    v_add_u32 v{PV+1}, 0x10000, v{PV}
    s_waitcnt lgkmcnt(0)
    """)
    srd(k, SMIX, 30, 31, XB)
    def wr(m):
        for T in range(4): k.e(f"ds_write_b128 v{WA+T}, v[{ACC+m*16+T*4}:{ACC+m*16+T*4+3}] offset:{m*4096+T*1024}")
    for c,(m,i) in enumerate(seq):
        vwait(k, vq, lambda t: t==("A",c))
        b=RING[c%NR]
        for T in range(4):
            a=ACC+m*16+T*4; w=WF[i]+T*4
            cc="0" if i==0 else f"v[{a}:{a+3}]"
            k.e(f"v_mfma_f32_16x16x32_bf16 v[{a}:{a+3}], v[{w}:{w+3}], v[{b}:{b+3}], {cc}")
        if nxt<len(seq): ld(nxt); nxt+=1
        if c==nm*2-1: k.e("s_barrier")
        if c==nm*NI-1: stamp(k,7)
        if i==NI+1 and m>0: wr(m-1)
    O=WF[4]
    for c in range(8):
        k.e(f"v_lshlrev_b32 v{O+c}, 16, v{G4+c//2}" if c%2==0 else f"v_and_b32 v{O+c}, 0xffff0000, v{G4+c//2}")
    wr(nm-1)
    k.e("s_waitcnt lgkmcnt(0)\ns_barrier")
    stamp(k,8)
    rr=lambda sw: WF[sw//2]+(sw%2)*8
    for sw in range(8):
        if sw==7: k.e("s_waitcnt lgkmcnt(12)")
        for e in range(2): k.e(f"ds_read_b128 v[{rr(sw)+4*e}:{rr(sw)+4*e+3}], v{PV+(sw>>2)} offset:{(sw&3)*16384+e*256}")
    for sw in range(8):
        k.e(f"s_waitcnt lgkmcnt({14-2*sw})")
        for j in range(0,8,2): k.e(f"v_pk_add_f32 v[{O+j}:{O+j+1}], v[{O+j}:{O+j+1}], v[{rr(sw)+j}:{rr(sw)+j+1}]")
    P=O+8
    for j in range(4): k.e(f"v_cvt_pk_bf16_f32 v{P+j}, v{O+2*j}, v{O+2*j+1}")
    k.e(f"buffer_store_dwordx4 v[{P}:{P+3}], v{OA}, s[{SMIX}:{SMIX+3}], 0 offen")
    stamp(k,9); stamp_out(k)

def emit_kstep(k, M, R, now, prio_pos, prio_len, rd2=0):
    i=0; nM=len(M); nD=len(now); done=0; q=prio_len//4
    for mi,m in enumerate(M):
        pos=prio_pos+mi
        if PRIO and pos%q==0 and pos//q<4: k.e(f"s_setprio {3-pos//q}")
        k.e(m)
        for _ in range(2 if mi<rd2 else 1):
            if i<len(R):
                if i==13: k.e("s_waitcnt lgkmcnt(8)")
                k.e(R[i]); i+=1
        while now and done<(mi+1)*nD//nM: now.pop(0)(); done+=1
    assert i==len(R) and not now

WSLOT=16384; NWS=5; XBASE=NWS*WSLOT; XSLOT=22528; NXS=3
F_STAT=XBASE+NXS*XSLOT; F_DUMMY=F_STAT+3072
assert F_DUMMY+1024<=LDS_BYTES
ACC=16; AF=[112,136]; BF=[160,176]; Z=[192,208,224,240]
F_AREA={0:"s7",1:0,2:"s8",3:"s10",4:"s7",5:0,6:"s8",7:"s10",8:"s7"}
F_ZI=[Z[0],Z[1],112,128,144,160,176,Z[2],Z[3]]
def gen_F(k):
    k.e(f"""
    s_mul_i32 s60, s57, 37
    s_lshr_b32 s60, s60, 8
    s_mul_i32 s63, s60, 7
    s_sub_u32 s{S_CT}, s57, s63
    s_mul_i32 s{S_J}, s58, 3
    s_add_u32 s{S_J}, s{S_J}, s60
    s_mul_i32 s{S_CG}, s59, 7
    s_add_u32 s{S_CG}, s{S_CG}, s{S_CT}
    s_mul_i32 s{S_PJ}, s56, 3
    s_add_u32 s{S_PJ}, s{S_PJ}, s60
    s_mov_b32 s77, s60
    s_lshl_b32 s91, s57, 3
    s_add_u32 s91, s91, s{S_W}
    v_lshrrev_b32 v4, 4, v1
    s_lshl_b32 s60, s{S_W}, 2
    v_add_u32 v4, s60, v4
    v_and_b32 v5, 3, v4
    v_bfe_u32 v6, v4, 3, 1
    v_lshl_or_b32 v5, v6, 2, v5
    v_lshlrev_b32 v5, 1, v5
    v_and_b32 v6, 15, v1
    v_xor_b32 v5, v5, v6
    v_lshlrev_b32 v5, 4, v5
    v_mul_u32_u24 v2, 3584, v4
    v_add_u32 v2, v2, v5
    s_lshl_b32 s60, s{S_CG}, 8
    v_add_u32 v2, s60, v2
    v_lshrrev_b32 v6, 3, v1
    v_and_b32 v7, 7, v1
    v_lshrrev_b32 v8, 4, v1
    s_and_b32 s60, s{S_W}, 1
    s_lshl_b32 s60, s60, 2
    v_xor_b32 v7, v7, v8
    v_xor_b32 v7, s60, v7
    s_mul_i32 s62, s{S_J}, 174
    s_lshl_b32 s60, s{S_W}, 3
    s_add_u32 s60, s60, s62
    s_sub_u32 s60, s60, 1
    s_mul_i32 s60, s60, 896
    v_mul_u32_u24 v4, 896, v6
    v_lshl_add_u32 v4, v7, 4, v4
    v_add_u32 v4, s60, v4
    v_add_u32 v5, {63*896}, v4
    s_mov_b64 s[80:81], -1
    s_mov_b64 s[82:83], -1
    s_cmp_eq_u32 s{S_W}, 0
    s_cselect_b32 s80, 0xffffff00, s80
    s_cmp_eq_u32 s{S_W}, 4
    s_cselect_b32 s82, 0xffffff00, s82
    s_cmp_lt_u32 s{S_W}, 4
    s_cselect_b32 s63, 896, 0
    s_add_u32 s65, s{S_W1K}, {XBASE+16384}
    s_mov_b32 s64, {64*896}
    s_cmp_ge_u32 s{S_W}, 6
    s_cselect_b32 s64, 0x40000000, s64
    s_cselect_b32 s65, {F_DUMMY}, s65
    s_cselect_b32 s66, 0, {XSLOT}
    """)
    rot_setup(k, S_J, S_CG, ROT_F)
    k.e("s_waitcnt lgkmcnt(0)")
    srd(k, SX, 16, 17, XB); srd(k, SWA, 24, 25, 448*3584); srd(k, SWB, 26, 27, 448*3584)
    vq=Q(); nis={}
    def dW(vq, ks, mat):
        sl=(ks%NWS)*WSLOT+mat*8192
        if ROT_F:
            if mat==0 and ks%2==0: k.e(f"s_add_u32 s3, s3, 1\ns_cmp_eq_u32 s3, 7\ns_cselect_b32 s3, 0, s3\ns_mul_i32 s11, s3, {64*3584}\ns_lshl_b32 s{4+(ks//2)%3}, s3, 7")
            so=f"s_add_u32 s56, s11, {(ks&1)*32*3584}"
        else: so=f"s_mov_b32 s56, {ks*32*3584}"
        k.e(f"s_add_u32 m0, s{S_W1K}, {sl}\n{so}\nbuffer_load_dwordx4 v2, s[{(SWA,SWB)[mat]}:{(SWA,SWB)[mat]+3}], s56 offen lds"); vq.issue(("W",ks)); vq.nis[("W",ks)]=vq.nis.get(("W",ks),0)+1
    def dX(vq, p, t):
        sl=XBASE+(p%NXS)*XSLOT; po=f"s{4+p%3}" if ROT_F else str(p*128)
        if t==0:   k.e(f"s_add_u32 m0, s{S_W1K}, {sl}\ns_mov_b32 s56, {po}\ns_mov_b64 exec, s[80:81]\nbuffer_load_dwordx4 v4, s[{SX}:{SX+3}], s56 offen lds\ns_mov_b64 exec, -1")
        elif t==1: k.e(f"s_add_u32 m0, s{S_W1K}, {sl+8192}\ns_add_u32 s56, s63, {po}\ns_mov_b64 exec, s[82:83]\nbuffer_load_dwordx4 v5, s[{SX}:{SX+3}], s56 offen lds\ns_mov_b64 exec, -1")
        else:      k.e(f"s_mul_i32 s56, s66, {p%NXS}\ns_add_u32 m0, s65, s56\ns_add_u32 s56, s64, {po}\nbuffer_load_dwordx4 v5, s[{SX}:{SX+3}], s56 offen lds")
        vq.issue(("X",p)); vq.nis[("X",p)]=vq.nis.get(("X",p),0)+1
    gW=lambda ks: [("W",ks,0),("W",ks,1)]
    gX=lambda p: [("X",p,0),("X",p,1),("X",p,2)]
    run=lambda vq,d: (dW if d[0]=="W" else dX)(vq,d[1],d[2])
    vq.nis={}
    allp=[gW(0)+gX(0), gW(1), gW(2)+gX(1), gW(3), gW(4)+gX(2)]
    st_row_load(k, vq)
    for d in allp[0]: run(vq,d)
    pend0=[d for g in allp[F_PRO:] for d in g]
    srd(k, SWS, 34, 35, WS_BYTES); srd(k, SDBG, 32, 33, 256)
    lab=k.lab("nn")
    k.e(f"""
    s_or_b32 s56, s2, s{S_W}
    s_cmp_lg_u32 s56, 0
    s_cbranch_scc1 {lab}
    s_memrealtime s[58:59]
    s_waitcnt lgkmcnt(0)
    s_or_b32 s58, s58, 1
    v_mov_b32 v12, s58
    v_mov_b32 v13, s59
    v_mov_b32 v14, 0
    s_mov_b64 exec, 1
    buffer_store_dwordx2 v[12:13], v14, s[{SDBG}:{SDBG+3}], 0 offen sc0 sc1
    s_mov_b64 exec, -1
    {lab}:
    """)
    x_read_addr(k, 6, 7, 16)
    k.e(f"""
    s_lshr_b32 s56, s{S_W}, 2
    s_mul_i32 s56, s56, {6*2048}
    s_add_u32 s56, s56, {XBASE}
    v_add_u32 v6, s56, v6
    v_add_u32 v7, s56, v7
    v_lshrrev_b32 v18, 2, v16
    v_and_b32 v19, 3, v16
    v_and_b32 v20, 1, v17
    v_lshl_or_b32 v20, v20, 2, v18
    v_lshl_add_u32 v18, v17, 3, v18
    v_lshlrev_b32 v18, 8, v18
    v_lshl_add_u32 v18, v19, 3, v18
    s_and_b32 s56, s{S_W}, 3
    s_lshl_b32 s56, s56, 1
    v_xor_b32 v21, s56, v20
    v_xor_b32 v22, 1, v21
    v_lshl_add_u32 v8, v21, 5, v18
    v_lshl_add_u32 v9, v22, 5, v18
    v_add_u32 v10, 0xc000, v8
    v_add_u32 v11, 0xc000, v9
    v_lshrrev_b32 v16, 3, v1
    v_and_b32 v17, 1, v16
    v_lshrrev_b32 v16, 1, v16
    v_mul_u32_u24 v16, {XSLOT}, v16
    v_mul_u32_u24 v17, {96*128}, v17
    v_and_b32 v18, 7, v1
    v_lshlrev_b32 v18, 4, v18
    v_add3_u32 v16, v16, v17, v18
    v_add_u32 v16, {XBASE}, v16
    v_mov_b32 v20, 0x3f803f80
    v_mov_b32 v21, 0x3f803f80
    v_mov_b32 v22, 0x3f803f80
    v_mov_b32 v23, 0x3f803f80
    s_mov_b32 exec_hi, 0xffff
    ds_write_b128 v16, v[20:23]
    s_mov_b32 exec_hi, -1
    s_bitcmp1_b32 s{S_PJ}, 0
    s_cselect_b32 s92, 6, 0
    s_cselect_b32 s93, 3, 1
    s_cselect_b32 s94, 8, 2
    s_cselect_b32 s95, 5, 4
    s_lshr_b32 s{S_PJ}, s{S_PJ}, 1
    s_lshl_b32 s56, s{S_W}, 6
    v_add_u32 v{VGL}, s56, v1
    v_cmp_lt_u32 vcc, 95, v{VGL}
    v_cmp_ne_u32 s[58:59], 0, v{VGL}
    s_movk_i32 s56, 96
    v_cmp_ne_u32 s[60:61], s56, v{VGL}
    v_subbrev_co_u32 v{VGA}, vcc, 1, v{VGL}, vcc
    s_and_b64 s[58:59], s[58:59], s[60:61]
    v_cmp_gt_u32 vcc, 176, v{VGL}
    v_add_u32 v{VGA}, s62, v{VGA}
    s_and_b64 s[58:59], s[58:59], vcc
    s_movk_i32 s56, 2048
    v_cmp_gt_u32 s[60:61], s56, v{VGA}
    v_lshlrev_b32 v{VGA}, 4, v{VGA}
    v_add_u32 v{VGA}, {STATS_OFF}, v{VGA}
    s_and_b64 s[84:85], s[58:59], s[60:61]
    v_lshlrev_b32 v{VGL}, 4, v{VGL}
    v_add_u32 v{VGL}, {F_STAT}, v{VGL}
    v_lshlrev_b32 v16, 4, v1
    v_add_u32 v16, {F_DUMMY}, v16
    v_cndmask_b32 v{VGL}, v16, v{VGL}, vcc
    """)
    w2_setup(k, 16, 77)
    p2_addr(k, 4, 16)
    area_base(k, 7, 65536, 104448); area_base(k, 8, 32768, 120832); area_base(k, 10, 49152, 81920)
    for d in allp[1]: run(vq,d)
    touch1(k, vq)
    srd(k, SMIX, 28, 29, 1792*896)
    vwait(k, vq, lambda t: t==("ROW",))
    stats_compute(k, ZST, ZST+4)
    for g in allp[2:F_PRO]:
        for d in g: run(vq,d)
    vwait(k, vq, lambda t: t in (("W",0),("X",0)), "lgkmcnt(0)")
    k.e("s_barrier")
    stamp(k,1)
    def body(NM, hf):
        import copy
        vq_=Q(); vq_.q=list(vq.q); vq_.nis=dict(vq.nis); pend=list(pend0)
        return body2(NM,hf,vq_,pend)
    def body2(NM, hf, vq, pend):
        D_=lambda i: w2_dma(k,vq,i,F_AREA[i],SMIX,SWA)
        TR=lambda i: w2_tr(k,vq,i,F_AREA[i],TT,F_ZI[i])
        def reads(ks):
            L=[]; P=ks&1; slot=ks%NWS
            wb=(8,9) if slot<3 else (10,11); so=(slot if slot<3 else slot-3)*WSLOT; xs=(ks>>1)%NXS
            xr=lambda m: L.append(f"ds_read_b128 v[{AF[P]+m*4}:{AF[P]+m*4+3}], v{6+(ks&1)} offset:{xs*XSLOT+m*2048}")
            xr(0)
            for mat in range(2):
                for T in range(2):
                    b=BF[P]+(mat*2+T)*4
                    for h in range(2): L.append(f"ds_read_b64_tr_b16 v[{b+2*h}:{b+2*h+1}], v{wb[T]} offset:{so+mat*8192+h*1024}")
            for m in range(1,NM): xr(m)
            return L
        def mfmas(ks):
            P=ks&1; L=[]
            for m in range(NM):
                for n in range(4):
                    a=ACC+(m*4+n)*4; c="0" if ks==0 else f"v[{a}:{a+3}]"
                    L.append(f"v_mfma_f32_16x16x32_bf16 v[{a}:{a+3}], v[{BF[P]+n*4}:{BF[P]+n*4+3}], v[{AF[P]+m*4}:{AF[P]+m*4+3}], {c}")
            return L
        for r in reads(0): k.e(r)
        for ks in range(14):
            if ks<13: assert vq.nis.get(("W",ks+1))==2 and vq.nis.get(("X",(ks+1)>>1))==3, ks
            vwait(k, vq, lambda t: (t[0]=="W" and t[1]<=ks+1) or (t[0]=="X" and t[1]<=(ks+1)>>1), "lgkmcnt(0)")
            k.e("s_barrier")
            if KST: stamp(k,10+ks)
            if ks+5<14: pend+=gW(ks+5)
            if ks&1 and (ks>>1)+3<7: pend+=gX((ks>>1)+3)
            now=[(lambda d=d: run(vq,d)) for d in pend[:F_BUD]]; del pend[:F_BUD]
            if ks==0: now.append(lambda: st_nonce_load(k,vq))
            if ks==3: now.insert(0,lambda: st_publish(k,vq))
            if ks==T2KS:
                def t2():
                    k.e(f"""
                    v_lshlrev_b32 v{G4}, 7, v1
                    v_mov_b32 v{G4+1}, {OOB}
                    v_cmp_gt_u32 vcc, 11, v1
                    s_mul_i32 s56, s91, {75*128}
                    buffer_load_dword v{VDUM}, v{G4}, s[{SMIX}:{SMIX+3}], s56 offen
                    v_cndmask_b32 v{G4+2}, v{G4+1}, v{G4}, vcc
                    v_cmp_gt_u32 vcc, 19, v1
                    s_add_u32 s56, s56, 8192
                    buffer_load_dword v{VDUM}, v{G4+2}, s[{SMIX}:{SMIX+3}], s56 offen
                    v_cndmask_b32 v{G4+2}, v{G4+1}, v{G4}, vcc
                    s_mov_b32 s{SDBG}, s20
                    s_mov_b32 s{SDBG+1}, s21
                    s_mov_b32 s{SDBG+2}, {448*896}
                    s_mul_i32 s56, s91, {19*128}
                    buffer_load_dword v{VDUM}, v{G4+2}, s[{SDBG}:{SDBG+3}], s56 offen
                    """)
                    for _ in range(3): vq.issue(("T2",))
                now.append(t2)
            if ks==9: now.append(lambda: st_gran_load(k,vq))
            if ks==11:
                def gc():
                    st_gran_check(k, vq)
                    k.e(f"""
                    v_rcp_f32 v{G4+2}, v{G4+1}
                    v_mul_f32 v{G4+3}, v{G4+1}, v{G4+1}
                    v_sub_f32 v{G4}, 0, v{G4}
                    v_mul_f32 v{G4+1}, {hex(f2u(C0))}, v{G4+2}
                    v_mul_f32 v{VGA}, v{G4+2}, v{G4+2}
                    v_mul_f32 v{G4+2}, v{G4+2}, v{VGA}
                    v_mul_f32 v{G4+2}, {hex(f2u(C1))}, v{G4+2}
                    ds_write_b128 v{VGL}, v[{G4}:{G4+3}]
                    """)
                now.append(gc)
            if ks in FD: now=D_(FD.index(ks))+now
            emit_kstep(k, mfmas(ks), reads(ks+1) if ks<13 else [], now, 0, NM*4)
        assert not pend
        stamp(k,2)
        CS=Z[2]
        k.e("s_setprio 0\ns_barrier")
        srd(k, SWA, 20, 21, 448*896)
        k.e(f"""
        v_and_b32 v4, 15, v1
        v_lshlrev_b32 v4, 4, v4
        v_add_u32 v4, {F_STAT+hf*96*16}, v4
        ds_read_b128 v[{G4}:{G4+3}], v4
        v_lshlrev_b32 v5, 4, v1
        s_mul_i32 s62, s{S_J}, {11*A2_VT}
        s_lshl_b32 s63, s{S_CG}, 2
        s_and_b32 s56, s{S_W}, 3
        s_add_u32 s63, s63, s56
        s_lshl_b32 s63, s63, 10
        s_add_u32 s62, s62, s63
        s_add_u32 s62, s62, {hf*6*A2_VT}
        s_lshl_b32 s63, s{S_J}, 7
        s_lshl_b32 s56, s{S_CG}, 3
        s_add_u32 s63, s63, s56
        s_add_u32 s63, s63, {FLAG_OFF}
        """)
        for r in range(16): k.e(f"v_mov_b32_dpp v{CS+r}, v{ACC+r} row_newbcast:0 row_mask:0xf bank_mask:0xf")
        def tile(m, side):
            a=ACC+m*16; st=G4; T=[2,6,8,10]
            P=lambda x: f"v[{x}:{x+1}]"
            K0=176; S2=178
            L=["s_waitcnt lgkmcnt(0)", f"v_mov_b32 v{K0}, v{st+1}", f"v_mov_b32 v{S2}, v{st+3}"]
            for r in range(4): L.append(f"v_pk_fma_f32 {P(a+2*r)}, {P(st)}, {P(CS+2*r)}, {P(a+2*r)} op_sel_hi:[0,1,1]")
            for r in range(4): L.append(f"v_pk_mul_f32 {P(T[r])}, {P(a+2*r)}, {P(a+2*r)}")
            for r in range(4): L.append(f"v_pk_fma_f32 {P(T[r])}, {P(T[r])}, {P(st+2)}, {P(K0)} op_sel_hi:[1,0,0]")
            for r in range(4): L.append(f"v_pk_mul_f32 {P(T[r])}, {P(T[r])}, {P(a+2*r)}")
            for r in range(4): L+= [f"v_exp_f32 v{T[r]}, v{T[r]}", f"v_exp_f32 v{T[r]+1}, v{T[r]+1}", f"v_pk_fma_f32 {P(a+8+2*r)}, {P(st)}, {P(CS+8+2*r)}, {P(a+8+2*r)} op_sel_hi:[0,1,1]"]
            for r in range(4): L.append(f"v_pk_fma_f32 {P(T[r])}, {P(T[r])}, {P(S2)}, {P(S2)} op_sel_hi:[1,0,0]")
            for r in range(4): L+= [f"v_rcp_f32 v{T[r]}, v{T[r]}", f"v_rcp_f32 v{T[r]+1}, v{T[r]+1}", f"v_pk_mul_f32 {P(a+2*r)}, {P(a+2*r)}, {P(a+8+2*r)}"]
            for r in range(4): L.append(f"v_pk_mul_f32 {P(a+2*r)}, {P(a+2*r)}, {P(T[r])}")
            if m+1<NM: L.append(f"ds_read_b128 v[{G4}:{G4+3}], v4 offset:{(m+1)*256}")
            for r in range(4): L.append(f"v_cvt_pk_bf16_f32 v{a+8+r}, v{a+2*r}, v{a+2*r+1}")
            for c,l in enumerate(L):
                k.e(l)
                if side and c%6==3: side.pop(0)()
            while side: side.pop(0)()
            k.e(f"s_add_u32 s56, s62, {m*A2_VT}\nbuffer_store_dwordx4 v[{a+8}:{a+11}], v5, s[{SWS}:{SWS+3}], s56 offen {STF}"); vq.issue(("H",))
        for m in range(NM):
            side=[]
            if EPI>=2 and m==2: side=D_(4)+D_(5)
            if EPI>=3 and m==3: side=D_(6)
            tile(m, side)
            if EPI>=2 and m==1: TR(0); TR(1)
            if EPI>=3 and m==2: TR(2)
            if m==1: stamp(k,24)
            if m==3: stamp(k,25)
        stamp(k,3)
        return vq
    k.e(f"s_cmp_ge_u32 s{S_W}, 4\ns_cbranch_scc1 kF_h1")
    vq0=body(6,0)
    k.e("s_branch kF_join\nkF_h1:")
    vq1=body(5,1)
    k.e("kF_join:\ns_setprio 0")
    vb=Both(vq0,vq1)
    n0={1:0,2:2,3:3}[EPI]
    TRb=lambda i,tmp=TT: w2_tr(k,vb,i,F_AREA[i],tmp,F_ZI[i])
    Db=lambda i: [f() for f in w2_dma(k,vb,i,F_AREA[i],SMIX,SWA)]
    def pre():
        for i in range(n0,4): TRb(i)
        k.e("s_waitcnt lgkmcnt(0)")
    def mid():
        for i in range(4+n0,8): Db(i)
        TRb(4); k.e("s_waitcnt lgkmcnt(0)"); Db(8)
    def fin():
        for i in range(5,9): TRb(i,8)
    gen_P2(k, vb, 4, F_ZI, pre, mid, fin, 16, [80+4*i for i in range(7)], ("H",), 63, ["s92","s93","s94","s95"], 108)
    k.e("s_endpgm")

SLOT=49152; A_STAT=3*SLOT; AWOFF=26*1024
A_ACC=16; A_H=88; A_XF=96; A_WF=128; XO=192
def gen_A(k):
    vq=Q(); S_RG=S_J; S_HP=S_CG
    k.e(f"""
    kA:
    s_mul_i32 s60, s58, 11
    s_add_u32 s60, s60, s57
    s_sub_u32 s60, s60, 21
    s_lshr_b32 s{S_RG}, s60, 2
    s_and_b32 s60, s60, 3
    s_lshl_b32 s{S_HP}, s59, 2
    s_add_u32 s{S_HP}, s{S_HP}, s60
    s_mul_i32 s62, s{S_RG}, 192
    s_mul_i32 s60, s56, 11
    s_add_u32 s60, s60, s57
    s_sub_u32 s60, s60, 21
    s_mul_i32 s{S_PJ}, s60, 293
    s_lshr_b32 s{S_PJ}, s{S_PJ}, 11
    s_mul_i32 s63, s{S_PJ}, 7
    s_sub_u32 s{S_CT}, s60, s63
    v_lshrrev_b32 v10, 3, v1
    v_and_b32 v11, 7, v1
    v_lshrrev_b32 v12, 4, v1
    s_and_b32 s60, s{S_W}, 1
    s_lshl_b32 s60, s60, 2
    v_xor_b32 v13, v11, v12
    v_xor_b32 v13, s60, v13
    s_lshl_b32 s60, s{S_W}, 3
    s_add_u32 s60, s60, s62
    s_sub_u32 s60, s60, 16
    v_add_u32 v10, s60, v10
    s_movk_i32 s63, 896
    v_mul_lo_u32 v4, v10, s63
    v_lshl_add_u32 v4, v13, 4, v4
    v_add_u32 v5, {64*896}, v4
    v_mov_b32 v14, {OOB}
    v_cmp_gt_i32 vcc, 0, v10
    s_mov_b64 s[80:81], -1
    s_cmp_eq_u32 s{S_W}, 0
    s_cselect_b32 s80, 0xffffff00, s80
    v_cndmask_b32 v4, v4, v14, vcc
    s_mov_b32 s64, {(2**32+21)//22}
    s_mul_i32 s63, s{S_HP}, 112
    """)
    def wvoff(dst, uadd):
        k.e(f"""
        s_lshl_b32 s60, s{S_W}, 6
        s_add_i32 s60, s60, {uadd*64}
        v_add_u32 v10, s60, v1
        v_mul_hi_u32 v11, v10, s64
        v_mul_u32_u24 v12, 22, v11
        v_sub_u32 v12, v10, v12
        v_and_b32 v13, 0x33, v11
        v_bfe_u32 v14, v11, 2, 1
        v_lshl_or_b32 v13, v14, 3, v13
        v_bfe_u32 v14, v11, 3, 1
        v_lshl_or_b32 v13, v14, 2, v13
        v_mul_u32_u24 v13, 2688, v13
        v_mul_u32_u24 v14, 37, v12
        v_lshrrev_b32 v14, 8, v14
        v_mul_u32_u24 v15, {896-112}, v14
        v_lshl_add_u32 v15, v12, 4, v15
        v_add3_u32 v13, v13, v15, s63
        v_cmp_gt_u32 vcc, 21, v12
        v_mov_b32 v14, {OOB}
        s_nop 0
        v_cndmask_b32 v{dst}, v14, v13, vcc
        """)
    rot_setup(k, S_RG, S_HP, ROT_A)
    wvoff(6, -2)
    k.e("s_waitcnt lgkmcnt(0)")
    srd(k, SX, 16, 17, XB); srd(k, SWA, 18, 19, 448*2688)
    nis={}
    def dma(p, i):
        sl=(p%3)*SLOT+i*8192
        if i==0: k.e(f"s_add_u32 s3, s3, 1\ns_cmp_eq_u32 s3, 7\ns_cselect_b32 s3, 0, s3\ns_lshl_b32 s10, s3, 7\ns_mul_i32 s11, s3, {64*2688}")
        k.e(f"s_add_u32 m0, s{S_W1K}, {sl}")
        if i==0: k.e(f"s_mov_b64 exec, s[80:81]\nbuffer_load_dwordx4 v4, s[{SX}:{SX+3}], s10 offen lds\ns_mov_b64 exec, -1")
        elif i<3: k.e(f"s_add_u32 s56, s10, {(i-1)*64*896}\nbuffer_load_dwordx4 v5, s[{SX}:{SX+3}], s56 offen lds")
        elif i==3: k.e(f"s_mul_i32 s56, s65, s3\nbuffer_load_dwordx4 v6, s[{SMIX}:{SMIX+3}], s56 offen lds")
        else: k.e(f"s_nop 0\nbuffer_load_dwordx4 v{(2,3)[i-4]}, s[{SWA}:{SWA+3}], s11 offen lds")
        vq.issue(("S",p)); nis[p]=nis.get(p,0)+1
    stage=lambda p: [ (lambda i=i: dma(p,i)) for i in range(6)]
    pend=stage(0)+stage(1)+stage(2)
    st_row_load(k, vq)
    for _ in range(3): pend.pop(0)()
    k.e(f"""
    v_add_u32 v10, {128*896}, v5
    s_cmp_lt_u32 s{S_W}, 2
    s_cselect_b64 vcc, -1, 0
    v_cndmask_b32 v6, v6, v10, vcc
    s_movk_i32 s65, 128
    s_cselect_b32 s65, s65, {64*2688}
    s_cselect_b32 s{SMIX}, s16, s18
    s_cselect_b32 s{SMIX+1}, s17, s19
    s_cselect_b32 s{SMIX+2}, s{SX+2}, s{SWA+2}
    s_mov_b32 s{SMIX+3}, 0x20000
    """)
    pend.pop(0)()
    wvoff(2, 6); pend.pop(0)()
    wvoff(3, 14); pend.pop(0)()
    srd(k, SWS, 34, 35, WS_BYTES); srd(k, SDBG, 32, 33, 256); srd(k, SWB, 28, 29, 1792*896)
    k.e(f"s_lshr_b32 s66, s{S_W}, 1\ns_and_b32 s64, s{S_W}, 1\ns_mul_i32 s60, s66, {3*2048}")
    x_read_addr(k, 7, 8, 16)
    k.e(f"""
    v_add_u32 v{XO}, s60, v7
    v_add_u32 v{XO+1}, s60, v8
    v_lshrrev_b32 v18, 2, v16
    v_and_b32 v19, 3, v16
    v_lshrrev_b32 v20, 1, v17
    v_lshl_add_u32 v18, v20, 4, v18
    v_and_b32 v20, 1, v17
    v_lshl_add_u32 v18, v20, 2, v18
    v_mul_u32_u24 v18, 352, v18
    s_mul_i32 s60, s64, 56
    s_add_u32 s60, s60, {AWOFF}
    v_add_u32 v18, s60, v18
    v_lshl_add_u32 v9, v19, 3, v18
    v_min_u32 v19, 2, v19
    v_lshl_add_u32 v{XO+2}, v19, 3, v18
    v_add_u32 v{XO+2}, 32, v{XO+2}
    s_bitcmp1_b32 s66, 0
    s_cselect_b64 vcc, -1, 0
    v_cndmask_b32 v{XO+3}, v9, v{XO+2}, vcc
    v_add_u32 v{XO+4}, 224, v{XO+3}
    s_lshr_b32 s60, s66, 1
    s_mul_i32 s60, s60, 112
    v_add_u32 v{XO+3}, s60, v{XO+3}
    v_lshrrev_b32 v16, 3, v1
    v_mul_u32_u24 v16, {SLOT}, v16
    v_and_b32 v17, 7, v1
    v_lshl_add_u32 v16, v17, 4, v16
    v_mov_b32 v20, 0x3f803f80
    v_mov_b32 v21, 0x3f803f80
    v_mov_b32 v22, 0x3f803f80
    v_mov_b32 v23, 0x3f803f80
    s_mov_b64 exec, 0xffffff
    ds_write_b128 v16, v[20:23]
    s_mov_b64 exec, -1
    s_mov_b32 s92, 7
    s_mov_b32 s93, 9
    s_mov_b32 s94, 10
    s_mov_b32 s95, 10
    s_lshl_b32 s56, s{S_W}, 6
    v_add_u32 v{VGL}, s56, v1
    s_sub_u32 s56, s62, 16
    v_add_u32 v{VGA}, s56, v{VGL}
    v_cmp_gt_u32 vcc, 208, v{VGL}
    s_movk_i32 s56, 2048
    v_cmp_gt_u32 s[60:61], s56, v{VGA}
    v_lshlrev_b32 v{VGA}, 4, v{VGA}
    v_add_u32 v{VGA}, {STATS_OFF}, v{VGA}
    s_and_b64 s[84:85], vcc, s[60:61]
    v_lshlrev_b32 v{VGL}, 2, v{VGL}
    v_add_u32 v{VGL}, {A_STAT}, v{VGL}
    v_mov_b32 v16, {A_STAT+2048}
    v_cndmask_b32 v{VGL}, v16, v{VGL}, vcc
    s_mov_b32 s77, 1
    """)
    w2_setup(k, 16, 77)
    p2_addr(k, 3, 16)
    area_base(k, 7, 81920, 131072)
    HAL=149504
    PSEL=[209,211,213,215]; PST=216; PH0=219; PH1=220; PEX=221; PCS=222; PCV=223; PPR=208; PNM=210; PVS=212
    k.e(f"""
    v_lshlrev_b32 v16, 4, v1
    v_lshrrev_b32 v17, 4, v1
    v_and_b32 v18, 15, v1
    s_mul_i32 s60, s64, 6144
    s_add_u32 s60, s60, {HAL}
    s_lshl_b32 s61, s66, 10
    s_add_u32 s61, s61, s60
    v_add_u32 v{PH0}, s61, v16
    s_and_b32 s61, s66, 1
    s_lshl_b32 s61, s61, 10
    s_add_u32 s61, s61, s60
    s_add_u32 s61, s61, 4096
    v_add_u32 v{PH1}, s61, v16
    s_lshl_b32 s61, s{S_W}, 12
    s_add_u32 s61, s61, s7
    v_add_u32 v{PEX}, s61, v16
    v_lshl_add_u32 v{PCS}, v17, 8, s60
    v_lshl_add_u32 v{PCV}, v18, 4, s60
    s_lshl_b32 s61, s{S_W}, 12
    s_add_u32 s58, s61, {81920-8192}
    s_add_u32 s59, s61, {131072-16384-8192}
    s_cmp_ge_u32 s{S_W}, 6
    s_cselect_b32 s61, s59, s58
    s_add_u32 s58, s60, 2048
    s_cmp_eq_u32 s66, 0
    s_cselect_b32 s61, s58, s61
    v_add_u32 v{PPR}, s61, v16
    s_mul_i32 s61, s66, {48*4}
    s_add_u32 s61, s61, {A_STAT}
    v_lshl_add_u32 v{PNM}, v18, 2, s61
    v_lshl_add_u32 v{PVS}, v17, 4, s61
    v_and_b32 v19, 1, v18
    v_cmp_eq_u32 s[86:87], 1, v19
    v_lshl_add_u32 v20, v17, 2, v19
    v_cmp_le_u32 s[88:89], v20, v18
    v_add_u32 v20, 2, v20
    v_cmp_le_u32 s[90:91], v20, v18
    v_cmp_eq_u32 s[82:83], 3, v17
    s_or_b32 s61, s{S_RG}, s66
    s_cmp_eq_u32 s61, 0
    s_cselect_b64 s[92:93], -1, 0
    v_mov_b32 v19, 0x0c0c0100
    v_mov_b32 v20, 0x01000c0c
    v_cndmask_b32 v19, v19, v20, s[86:87]
    v_mov_b32 v20, 0x0c0c0302
    v_mov_b32 v21, 0x03020c0c
    v_cndmask_b32 v20, v20, v21, s[86:87]
    v_mov_b32 v21, 0x0c0c0c0c
    v_cndmask_b32 v{PSEL[0]}, v19, v21, s[88:89]
    v_cndmask_b32 v{PSEL[1]}, v20, v21, s[90:91]
    v_cndmask_b32 v{PSEL[2]}, v21, v19, s[88:89]
    v_cndmask_b32 v{PSEL[3]}, v21, v20, s[90:91]
    s_mul_i32 s94, s{S_RG}, 12
    s_mul_i32 s61, s66, 3
    s_add_u32 s94, s94, s61
    s_lshl_b32 s94, s94, 4
    s_lshl_b32 s61, s{S_HP}, 1
    s_add_u32 s94, s94, s61
    s_add_u32 s94, s94, s64
    s_lshl_b32 s94, s94, 10
    s_add_u32 s94, s94, {O_OFF}
    v_mov_b32 v{PST}, v16
    s_lshl_b32 s95, s{S_RG}, 6
    s_lshl_b32 s56, s{S_HP}, 3
    s_add_u32 s95, s95, s56
    s_add_u32 s95, s95, {AFLAG_OFF}
    """)
    AREA={0:49152,1:98304,2:0,3:"s7",4:49152,5:98304,6:0,7:"s7",8:49152}
    ZI=[208,224,160,176,192,96,128,144,240]
    D_=lambda i: w2_dma(k,vq,i,AREA[i],SWB,SWA)
    TR=lambda i,tmp=TT: w2_tr(k,vq,i,AREA[i],tmp,ZI[i])
    RADDR=[7,8,XO,XO+1,9,XO+2,XO+3,XO+4]
    cur={"slot":0}
    def setslot(s):
        d=(s-cur["slot"])*SLOT
        if d:
            for r in RADDR: k.e(f"v_add_u32 v{r}, {d&0xffffffff}, v{r}")
        cur["slot"]=s
    def reads(ks):
        P=ks&1; L=[]
        def tr(fr, areg, off):
            b=A_WF+P*32+fr*4
            for h in range(2): L.append(f"ds_read_b64_tr_b16 v[{b+2*h}:{b+2*h+1}], v{areg} offset:{(ks&1)*32*352+off+h*8*352}")
        xr=lambda fr,areg,off: L.append(f"ds_read_b128 v[{A_XF+P*16+fr*4}:{A_XF+P*16+fr*4+3}], v{areg} offset:{off}")
        xr(0, XO+(ks&1), 2048)
        for sec in range(3): tr(sec*2, 9, sec*112); tr(sec*2+1, XO+2, sec*112)
        xr(1, XO+(ks&1), 4096); xr(2, XO+(ks&1), 6144); xr(3, 7+(ks&1), 0)
        tr(6, XO+3, 0); tr(7, XO+4, 0)
        return L
    def mfmas(ks):
        P=ks&1; L=[]
        def mm(a, fr, xf, ct):
            w=A_WF+P*32+fr*4; x=A_XF+P*16+xf*4; cc="0" if ks==0 else f"v[{a}:{a+3}]"
            A,B=(w,x) if ct else (x,w)
            L.append(f"v_mfma_f32_16x16x32_bf16 v[{a}:{a+3}], v[{A}:{A+3}], v[{B}:{B+3}], {cc}")
        for m in range(3):
            for t in range(6): mm(A_ACC+(m*6+t)*4, t, m, t<4)
        mm(A_H, 6, 3, True); mm(A_H+4, 7, 3, False)
        return L
    if T1:
        k.e(f"s_mov_b64 s[4:5], s[{SMIX}:{SMIX+1}]\ns_mov_b32 s6, s{SMIX+2}")
        touch1(k, vq)
        k.e(f"s_mov_b64 s[{SMIX}:{SMIX+1}], s[4:5]\ns_mov_b32 s{SMIX+2}, s6")
    vwait(k, vq, lambda t: t==("ROW",))
    stats_compute(k, ZST, ZST+4)
    for _ in range(A_PRO-6): pend.pop(0)()
    vwait(k, vq, lambda t: t==("S",0), "lgkmcnt(0)")
    k.e("s_barrier")
    stamp(k,1)
    for i,s_ in enumerate(reads(0)):
        if i==14: k.e("s_waitcnt lgkmcnt(6)")
        k.e(s_)
    for ks in range(14):
        p=ks>>1
        if ks&1 and ks<13:
            assert nis.get(p+1,0)==6, (ks,nis)
            vwait(k, vq, lambda t: t[0]=="S" and t[1]<=p+1, "lgkmcnt(0)")
            k.e("s_barrier")
            setslot((p+1)%3)
            if p+3<7: pend+=stage(p+3)
        else: k.e("s_waitcnt lgkmcnt(0)")
        if KST: stamp(k,10+ks)
        now=pend[:A_BUD]; del pend[:A_BUD]
        if ks==0: now.append(lambda: st_nonce_load(k,vq))
        if ks==3: now.insert(0,lambda: st_publish(k,vq))
        if ks==8: now.append(lambda: st_gran_load(k,vq))
        if ks==10:
            def gc():
                st_gran_check(k, vq)
                k.e(f"""
                v_rcp_f32 v{G4+1}, v{G4+1}
                v_sub_f32 v{G4}, 0, v{G4}
                v_cndmask_b32 v{G4}, 0, v{G4}, s[84:85]
                v_cndmask_b32 v{G4+1}, 0, v{G4+1}, s[84:85]
                ds_write2st64_b32 v{VGL}, v{G4}, v{G4+1} offset0:0 offset1:4
                """)
            now.append(gc)
        if ks in AD: now=D_(AD.index(ks))+now
        emit_kstep(k, mfmas(ks), reads(ks+1) if ks<13 else [], now, ((ks+1)&1)*20, 40, rd2=6)
    assert not pend
    stamp(k,2)
    k.e("s_setprio 0")
    srd(k, SWA, 20, 21, 448*896)
    side=[]; cnt={"c":0}
    def E(txt, every=8):
        for l in txt.split("\n"):
            if not l.strip(): continue
            k.e(l); cnt["c"]+=1
            if side and cnt["c"]%every==0 and not l.strip().startswith(("s_cmp","s_cselect","s_bitcmp")): side.pop(0)()
    CSQ=96; CSK=104; CSV=[112,114]; NMU=[116,118,120,122]; RS=[124,126,192,194]; SEL=PSEL; PK=128; PV=136; V0=144; V1=152; VS=88
    for i in range(4): E(f"ds_read_b32 v{NMU[i]}, v{PNM} offset:{i*64}\nds_read_b32 v{RS[i]}, v{PNM} offset:{1024+i*64}")
    for t in range(4):
        a=A_ACC+(2*6+2+t)*4
        E(f"ds_write_b128 v{PEX}, v[{a}:{a+3}] offset:{t*1024}")
    E(f"""
    ds_write_b128 v{PH0}, v[{A_H}:{A_H+3}]
    ds_write_b128 v{PH1}, v[{A_H+4}:{A_H+7}]
    s_waitcnt lgkmcnt(0)
    s_barrier
    ds_read_b128 v[{CSK}:{CSK+3}], v{PCS} offset:2048
    ds_read_b128 v[{CSK+4}:{CSK+7}], v{PCS} offset:3072
    ds_read_b128 v[{CSQ}:{CSQ+3}], v{PCS}
    ds_read_b128 v[{CSQ+4}:{CSQ+7}], v{PCS} offset:1024
    ds_read_b128 v[{PK}:{PK+3}], v{PPR}
    ds_read_b128 v[{PK+4}:{PK+7}], v{PPR} offset:1024
    ds_read_b32 v{CSV[0]}, v{PCV} offset:4096
    ds_read_b32 v{CSV[1]}, v{PCV} offset:5120
    ds_read_b128 v[{PV}:{PV+3}], v{PPR} offset:2048
    ds_read_b128 v[{PV+4}:{PV+7}], v{PPR} offset:3072
    ds_read_b128 v[{VS}:{VS+3}], v{PVS}
    ds_read_b128 v[{VS+4}:{VS+7}], v{PVS} offset:1024
    s_mov_b32 s59, {hex(f2u(1.0/math.sqrt(28.0)*math.log2(math.e)))}
    v_mov_b32 v12, 0xff800000
    """)
    P=lambda x: f"v[{x}:{x+1}]"
    def foldT(a, cs, i):
        s_=""
        for r in range(0,8,2): s_+=f"v_pk_fma_f32 {P(a+r)}, {P(NMU[i])}, {P(cs+r)}, {P(a+r)} op_sel_hi:[0,1,1]\n"
        for r in range(0,8,2): s_+=f"v_pk_mul_f32 {P(a+r)}, {P(RS[i])}, {P(a+r)} op_sel_hi:[0,1]\n"
        for r in range(4): s_+=f"v_cvt_pk_bf16_f32 v{a+r}, v{a+2*r}, v{a+2*r+1}\n"
        return s_
    def foldV(a, i):
        s_=""
        for t in range(2):
            for r in (0,2): s_+=f"v_pk_fma_f32 {P(a+4*t+r)}, {P(VS+r)}, {P(CSV[t])}, {P(a+4*t+r)} op_sel_hi:[1,0,1]\n"
        for t in range(2):
            for r in (0,2): s_+=f"v_pk_mul_f32 {P(a+4*t+r)}, {P(VS+4+r)}, {P(a+4*t+r)}\n"
        for t in range(2):
            d=(V0,V1)[t]+2*i
            s_+=f"v_cvt_pk_bf16_f32 v{d}, v{a+4*t}, v{a+4*t+1}\nv_cvt_pk_bf16_f32 v{d+1}, v{a+4*t+2}, v{a+4*t+3}\n"
        if i<3: s_+=f"ds_read_b128 v[{VS}:{VS+3}], v{PVS} offset:{(i+1)*64}\nds_read_b128 v[{VS+4}:{VS+7}], v{PVS} offset:{1024+(i+1)*64}\n"
        return s_
    am=lambda m: A_ACC+m*24
    KFr=lambda i: PK if i==0 else am(i-1)+8
    E("s_waitcnt lgkmcnt(8)")
    E(foldT(am(0)+8, CSK, 1)); E(foldT(am(0), CSQ, 1))
    E("s_waitcnt lgkmcnt(0)")
    E(foldV(PV, 0)); E(foldT(PK, CSK, 0)); E(foldT(am(1)+8, CSK, 2))
    E("s_waitcnt lgkmcnt(0)"); E(foldV(am(0)+16, 1)); E(foldT(am(1), CSQ, 2)); E(foldT(am(2)+8, CSK, 3))
    E("s_waitcnt lgkmcnt(0)"); E(foldV(am(1)+16, 2)); E(foldT(am(2), CSQ, 3))
    for m in range(3): E(f"v_cndmask_b32 v{am(m)+2}, v{am(m)+2}, 0, s[82:83]\nv_cndmask_b32 v{am(m)+3}, v{am(m)+3}, 0, s[82:83]")
    E("s_waitcnt lgkmcnt(0)"); E(foldV(am(2)+16, 3))
    k.e("s_barrier")
    for m in range(3):
        q=am(m)
        k.e(f"v_mfma_f32_16x16x32_bf16 v[{q+4}:{q+7}], v[{KFr(m)}:{KFr(m)+3}], v[{q}:{q+3}], 0")
        k.e(f"v_mfma_f32_16x16x32_bf16 v[{q+12}:{q+15}], v[{KFr(m+1)}:{KFr(m+1)+3}], v[{q}:{q+3}], 0")
    k.e("s_nop 3")
    X=lambda m: am(m)+16
    all3=lambda fmt: E("\n".join(fmt(m) for m in range(3)))
    all3(lambda m: f"v_cndmask_b32 v{X(m)}, v{am(m)+4}, v{am(m)+5}, s[86:87]\nv_cndmask_b32 v{X(m)+1}, v{am(m)+6}, v{am(m)+7}, s[86:87]\nv_cndmask_b32 v{X(m)+2}, v{am(m)+12}, v{am(m)+13}, s[86:87]\nv_cndmask_b32 v{X(m)+3}, v{am(m)+14}, v{am(m)+15}, s[86:87]")
    E(f"v_cndmask_b32 v{X(0)}, v{X(0)}, v12, s[92:93]\nv_cndmask_b32 v{X(0)+1}, v{X(0)+1}, v12, s[92:93]")
    all3(lambda m: f"v_cndmask_b32 v{X(m)}, v{X(m)}, v{X(m)+2}, s[88:89]\nv_cndmask_b32 v{X(m)+1}, v{X(m)+1}, v{X(m)+3}, s[90:91]")
    all3(lambda m: f"v_max_f32 v{X(m)+2}, v{X(m)}, v{X(m)+1}")
    def xred(op):
        for sw in ("v_permlane16_swap_b32","v_permlane32_swap_b32"):
            all3(lambda m: f"v_mov_b32 v{X(m)+3}, v{X(m)+2}")
            E("s_nop 1")
            all3(lambda m: f"{sw} v{X(m)+2}, v{X(m)+3}")
            E("s_nop 0")
            all3(lambda m: f"{op} v{X(m)+2}, v{X(m)+2}, v{X(m)+3}")
    xred("v_max_f32")
    all3(lambda m: f"v_sub_f32 v{X(m)}, v{X(m)}, v{X(m)+2}\nv_sub_f32 v{X(m)+1}, v{X(m)+1}, v{X(m)+2}")
    all3(lambda m: f"v_mul_f32 v{X(m)}, s59, v{X(m)}\nv_mul_f32 v{X(m)+1}, s59, v{X(m)+1}")
    all3(lambda m: f"v_exp_f32 v{X(m)}, v{X(m)}\nv_exp_f32 v{X(m)+1}, v{X(m)+1}")
    E("s_nop 0")
    all3(lambda m: f"v_add_f32 v{X(m)+2}, v{X(m)}, v{X(m)+1}")
    xred("v_add_f32")
    all3(lambda m: f"v_rcp_f32 v{X(m)+2}, v{X(m)+2}")
    E("s_nop 0")
    all3(lambda m: f"v_mul_f32 v{X(m)}, v{X(m)}, v{X(m)+2}\nv_mul_f32 v{X(m)+1}, v{X(m)+1}, v{X(m)+2}")
    all3(lambda m: f"v_cvt_pk_bf16_f32 v{X(m)}, v{X(m)}, v{X(m)+1}")
    all3(lambda m: "\n".join(f"v_perm_b32 v{X(m)+4+i}, v{X(m)}, v{X(m)}, v{SEL[i]}" for i in range(4)))
    E("s_nop 1")
    for m in range(3):
        k.e(f"v_mfma_f32_16x16x32_bf16 v[{am(m)}:{am(m)+3}], v[{V0+2*m}:{V0+2*m+3}], v[{X(m)+4}:{X(m)+7}], 0")
        k.e(f"v_mfma_f32_16x16x32_bf16 v[{am(m)+4}:{am(m)+7}], v[{V1+2*m}:{V1+2*m+3}], v[{X(m)+4}:{X(m)+7}], 0")
    k.e("s_nop 3")
    for m in range(3):
        a=am(m)
        for r in range(4): k.e(f"v_cvt_pk_bf16_f32 v{a+8+r}, v{a+2*r}, v{a+2*r+1}")
        k.e(f"s_add_u32 s56, s94, {m*16384}\nbuffer_store_dwordx4 v[{a+8}:{a+11}], v{PST}, s[{SWS}:{SWS+3}], s56 offen {STF}"); vq.issue(("O",))
    stamp(k,3)
    k.e(f"s_cmp_lt_u32 s{S_PJ}, 12\ns_cbranch_scc1 kA_p2\ns_waitcnt vmcnt(0)\ns_barrier\ns_cmp_lg_u32 s{S_W}, 0\ns_cbranch_scc1 k_done")
    flag_store(k,95)
    k.e("s_endpgm\nkA_p2:")
    def pre(): pass
    def mid():
        for i in range(4):
            if i>=2 or AD[i]>13:
                for f in D_(i): f()
        for i in (0,1,2,3):
            TR(i); k.e("s_waitcnt lgkmcnt(0)")
            for f in D_(i+4): f()
        TR(4); k.e("s_waitcnt lgkmcnt(0)")
        for f in D_(8): f()
    def fin():
        TR(5); TR(6); TR(7); TR(8,8)
    gen_P2(k, vq, 3, ZI, pre, mid, fin, 16, [64+4*i for i in range(8)], ("O",), 95, [7,9,10], 112)

def gen_all():
    k=K("kk")
    k.e(f"""
    s_cmp_ge_u32 s2, 256
    s_cbranch_scc1 k_done
    s_load_dwordx16 s[16:31], s[0:1], 0
    s_load_dwordx4 s[32:35], s[0:1], 64
    v_lshrrev_b32 v2, 6, v0
    v_and_b32 v1, 63, v0
    s_and_b32 s56, s2, 7
    v_readfirstlane_b32 s{S_W}, v2
    s_lshr_b32 s57, s2, 3
    s_lshr_b32 s58, s56, 1
    s_and_b32 s59, s56, 1
    s_lshl_b32 s{S_W1K}, s{S_W}, 10
    s_lshl_b32 s61, s2, 3
    s_add_u32 s61, s61, s{S_W}
    s_mul_i32 s61, s61, 896
    v_lshlrev_b32 v{ZST+4}, 4, v1
    v_mov_b32 v{ZST}, 0
    v_mov_b32 v{ZST+1}, 0
    v_mov_b32 v{ZST+2}, 0
    v_mov_b32 v{ZST+3}, 0
    """)
    if CPF:
        k.e(f"""
        s_getpc_b64 s[{SMIX}:{SMIX+1}]
        k_pc:
        s_mov_b32 s{SMIX+2}, k_end-k_pc
        s_mov_b32 s{SMIX+3}, 0x20000
        s_mul_i32 s60, s57, {CPF*128}
        v_lshlrev_b32 v3, 7, v0
        v_cmp_gt_u32 vcc, {CPF}, v0
        v_mov_b32 v4, {OOB}
        s_and_b32 s{SMIX+1}, s{SMIX+1}, 0xffff
        v_cndmask_b32 v3, v4, v3, vcc
        buffer_load_dword v{VDUM}, v3, s[{SMIX}:{SMIX+3}], s60 offen
        """)
    stamp(k,0)
    k.e("s_cmp_ge_u32 s57, 21\ns_cbranch_scc1 kA")
    gen_F(k)
    gen_A(k)
    k.e("k_done:\nk_end:")
    return kernel_text(KNAME, k.text(), 256, 102)

HEADER=open("parallel_sum__sliding_local_dilated__geglu_ffn__prompt.s.ref").read().split("; @launch")[0]
if __name__=="__main__":
    out=sys.argv[1]
    t,d=gen_all()
    txt=HEADER+f"; @launch grid=(256,1,1) block=(512,1,1) lds={LDS_BYTES}\n"+'.amdgcn_target "amdgcn-amd-amdhsa--gfx950"\n.text\n'+t+'.section .rodata,"a"\n.p2align 6\n'+d
    open(out,"w").write(txt)
    print(out, len(txt), txt.count("\n"))
```
